```python
import torch

def _softmax(x, axis=-1):
    return torch.softmax(x, dim=axis)

def _gelu(x):
    return torch.nn.functional.gelu(x, approximate='tanh')

def _silu(x):
    return torch.nn.functional.silu(x)

def _sigmoid(x):
    return torch.sigmoid(x)

def _layernorm(x, axis=-1, eps=1e-05):
    m = x.mean(dim=axis, keepdim=True)
    v = x.var(dim=axis, keepdim=True, unbiased=False)
    return (x - m) / torch.sqrt(v + eps)

def _scatter_add(tgt, idx, src, axis=0):
    return tgt.clone().index_add_(axis, idx, src)

def _segment_sum(src, seg, n):
    out = torch.zeros((n,) + src.shape[1:], dtype=src.dtype)
    return out.index_add_(0, seg, src)

def _pad(x, pw):
    flat = tuple((v for pair in reversed(pw) for v in pair))
    return torch.nn.functional.pad(x, flat)
kernel_name = 'adaLN_cond__compressed_kv_cla__swiglu_ffn__prompt'

def setup_inputs():

    _w = lambda a: (lambda t: t.to(torch.bfloat16) if t.is_floating_point() else t)(torch.as_tensor(a))

    def _A_setup():
        B, H, Sq, Sk, D, M = (1, 32, 2048, 2048, 128, 512)
        Dc = 4 * D
        return {'x': _w((lambda *s: torch.randn(*s, dtype=torch.bfloat16) * 0.05)(B, Sq, M)), 'c_kv': _w((lambda *s: torch.randn(*s, dtype=torch.bfloat16) * 1.6)(B, Sk, Dc)), 'w_q': _w((lambda *s: torch.randn(*s, dtype=torch.bfloat16) * 0.8)(M, H, D) * M ** (-0.5)), 'w_uk': _w((lambda *s: torch.randn(*s, dtype=torch.bfloat16) * 0.8)(Dc, H, D) * Dc ** (-0.5)), 'w_uv': _w((lambda *s: torch.randn(*s, dtype=torch.bfloat16) * 1.6)(Dc, H, D) * Dc ** (-0.5)), 'w_o': _w((lambda *s: torch.randn(*s, dtype=torch.bfloat16) * 1.6)(H, D, M) * (H * D) ** (-0.5))}
    _A_in = _A_setup()

    def _B_setup():
        B, S, D, F = (1, 2048, 512, 1792)
        return {'x': _w((lambda *s: torch.randn(*s, dtype=torch.bfloat16) * 0.05)(B, S, D)), 'w_gate': _w((lambda *s: torch.randn(*s, dtype=torch.bfloat16) * 0.05)(D, F)), 'w_up': _w((lambda *s: torch.randn(*s, dtype=torch.bfloat16) * 0.05)(D, F)), 'w_down': _w((lambda *s: torch.randn(*s, dtype=torch.bfloat16) * 0.05)(F, D))}
    _B_in = _B_setup()
    return {'A_x': _A_in['x'], 'A_c_kv': _A_in['c_kv'], 'A_w_q': _A_in['w_q'], 'A_w_uk': _A_in['w_uk'], 'A_w_uv': _A_in['w_uv'], 'A_w_o': _A_in['w_o'], 'B_x': _B_in['x'], 'B_w_gate': _B_in['w_gate'], 'B_w_up': _B_in['w_up'], 'B_w_down': _B_in['w_down'], 'c': _w((lambda *s: torch.randn(*s, dtype=torch.bfloat16) * 0.1)(1, 512) * 8.0), 'w_mod': _w((lambda *s: torch.randn(*s, dtype=torch.bfloat16) * 0.1)(512, 6 * 512) * 512 ** (-0.5) * 8.0)}

def reference(A_x, A_c_kv, A_w_q, A_w_uk, A_w_uv, A_w_o, B_x, B_w_gate, B_w_up, B_w_down, c, w_mod):

    def _A_ref(x, c_kv, w_q, w_uk, w_uv, w_o):
        B, Sq, M = (x.shape[0], x.shape[1], x.shape[2])
        Sk = c_kv.shape[1]
        H, D = (w_q.shape[1], w_q.shape[2])
        q = torch.einsum('bqm,mhd->bhqd', x, w_q)
        k = torch.einsum('bkc,chd->bhkd', c_kv, w_uk)
        v = torch.einsum('bkc,chd->bhkd', c_kv, w_uv)
        scores = torch.einsum('bhqd,bhkd->bhqk', q, k) * D ** (-0.5)
        off = Sk - Sq
        qi = torch.arange(Sq)[:, None]
        kj = torch.arange(Sk)[None, :]
        cmask = kj <= qi + off
        scores = torch.where(cmask[None, None], scores, -1000000000.0)
        p = _softmax(scores, axis=-1)
        ctx = torch.einsum('bhqk,bhkd->bhqd', p, v)
        return torch.einsum('bhqd,hdm->bqm', ctx, w_o)

    def _B_ref(x, w_gate, w_up, w_down):
        g = _silu(x @ w_gate)
        u = x @ w_up
        return g * u @ w_down
    x = A_x
    mod = (_silu(c) @ w_mod).reshape(c.shape[0], 6, 1, -1)
    sa, ca, ga, sb, cb, gb = (mod[:, 0].clone(), mod[:, 1].clone(), mod[:, 2].clone(), mod[:, 3].clone(), mod[:, 4].clone(), mod[:, 5].clone())
    h = _layernorm(x, axis=-1) * (1 + ca) + sa
    x = x + ga * _A_ref(h, A_c_kv, A_w_q, A_w_uk, A_w_uv, A_w_o)
    h = _layernorm(x, axis=-1) * (1 + cb) + sb
    x = x + gb * _B_ref(h, B_w_gate, B_w_up, B_w_down)
    return x
```

```python
import re

WS_MOD   = 0x0
WS_U12   = 0x4000
WS_AUX   = 0xC000
WS_STATS = 0x10000
WS_H     = 0x100000
WS_X1    = 0x300000
WS_Y     = 0x500000
WS_ACT   = 0x800000
WS_CTX   = 0x1000000
WS_KV    = 0x2000000
WS_SIZE  = 0x4000000

import struct as _st, math as _m
QK_SCALE = _m.log2(_m.e) / _m.sqrt(128.0)
QK_SCALE_HEX = hex(_st.unpack("<I", _st.pack("<f", QK_SCALE))[0])
KA = dict(x=0, ckv=8, wq=16, wuk=24, wuv=32, wo=40, bx=48, wg=56, wu=64, wd=72, c=80, wmod=88, out=96, dbg=104, ws=112)
SZ = dict(x=2048*512*2, ckv=2048*512*2, wq=512*4096*2, wuk=512*4096*2, wuv=512*4096*2, wo=4096*512*2,
          wg=512*1792*2, wu=512*1792*2, wd=1792*512*2, c=512*2, wmod=512*3072*2, out=2048*512*2, dbg=256, ws=WS_SIZE)

def vr(base, n=1, p="v"):
    return f"{p}{base}" if n == 1 else f"{p}[{base}:{base+n-1}]"
def ar(base, n=1): return vr(base, n, "a")
def sr(base, n=1): return vr(base, n, "s")

class Asm:
    def __init__(self):
        self.lines = []
        self.vm = []
        self.lg = []
        self.uid = 0
    def __call__(self, s):
        for l in s.split("\n"):
            l = l.strip()
            if not l: continue
            self.lines.append(l if l.endswith(":") or l.startswith(".") else "  " + l)
    def label(self, s): self.lines.append(s + ":")
    def comment(self, s): self.lines.append("  ; " + s)
    _gid = [0]
    def newlabel(self, p="L"):
        Asm._gid[0] += 1
        return f"{p}_{Asm._gid[0]}"
    def vmem(self, s, tag=None):
        self(s); self.vm.append(tag)
    def lds(self, s, tag=None):
        self(s); self.lg.append(tag)
    def vm_count_after(self, tag):
        idx = [i for i, t in enumerate(self.vm) if t == tag or (isinstance(t, (tuple, list, set)) and tag in t)]
        if not idx: return None
        return len(self.vm) - 1 - idx[-1]
    def wait_vm_str(self, tag):
        n = self.vm_count_after(tag)
        if n is None: return None
        k = min(n, 63)
        self.vm = self.vm[len(self.vm) - k:] if k else []
        return f"s_waitcnt vmcnt({k})"
    def wait_vm(self, tag):
        s = self.wait_vm_str(tag)
        if s: self(s)
    def wait_lg_str(self, tag):
        idx = [i for i, t in enumerate(self.lg) if t == tag]
        if not idx: return None
        n = len(self.lg) - 1 - idx[-1]
        k = min(n, 15)
        self.lg = self.lg[len(self.lg) - k:] if k else []
        return f"s_waitcnt lgkmcnt({k})"
    def wait_lg(self, tag):
        s = self.wait_lg_str(tag)
        if s: self(s)
    def wait_all(self):
        self("s_waitcnt vmcnt(0) lgkmcnt(0)"); self.vm = []; self.lg = []
    def wait_lg0(self):
        self("s_waitcnt lgkmcnt(0)"); self.lg = []
    def wait_vm0(self):
        self("s_waitcnt vmcnt(0)"); self.vm = []
    def text(self): return "\n".join(self.lines) + "\n"

def srd(a, s, ptr_s, size):
    a(f"s_mov_b32 s{s}, s{ptr_s}")
    a(f"s_and_b32 s{s+1}, s{ptr_s+1}, 0xffff")
    a(f"s_mov_b32 s{s+2}, {hex(size)}")
    a(f"s_mov_b32 s{s+3}, 0x20000")

def kernel_header(a, name):
    a(f".globl {name}")
    a(".p2align 8")
    a(f".type {name},@function")
    a(f"{name}:")

def descriptor(name, vgpr, accum, sgpr=96):
    return f""".p2align 6
.amdhsa_kernel {name}
  .amdhsa_next_free_vgpr {vgpr}
  .amdhsa_next_free_sgpr {sgpr}
  .amdhsa_accum_offset {accum}
  .amdhsa_group_segment_fixed_size 0
  .amdhsa_kernarg_size 120
  .amdhsa_user_sgpr_count 2
  .amdhsa_user_sgpr_kernarg_segment_ptr 1
  .amdhsa_system_sgpr_workgroup_id_x 1
.end_amdhsa_kernel
"""

def round_bf16(a, dst, src, tmp=None):
    a(f"v_cvt_pk_bf16_f32 v{dst}, v{src}, v{src}")
    a(f"v_lshlrev_b32 v{dst}, 16, v{dst}")

def wave_allreduce_add(a, v, t):
    a(f"s_nop 1")
    a(f"v_add_f32_dpp v{v}, v{v}, v{v} quad_perm:[1,0,3,2] row_mask:0xf bank_mask:0xf")
    a(f"s_nop 1")
    a(f"v_add_f32_dpp v{v}, v{v}, v{v} quad_perm:[2,3,0,1] row_mask:0xf bank_mask:0xf")
    a(f"s_nop 1")
    a(f"v_add_f32_dpp v{v}, v{v}, v{v} row_half_mirror row_mask:0xf bank_mask:0xf")
    a(f"s_nop 1")
    a(f"v_add_f32_dpp v{v}, v{v}, v{v} row_mirror row_mask:0xf bank_mask:0xf")
    a(f"v_mov_b32 v{t}, v{v}")
    a(f"s_nop 1")
    a(f"v_permlane16_swap_b32 v{v}, v{t}")
    a(f"s_nop 1")
    a(f"v_add_f32 v{v}, v{v}, v{t}")
    a(f"v_mov_b32 v{t}, v{v}")
    a(f"s_nop 1")
    a(f"v_permlane32_swap_b32 v{v}, v{t}")
    a(f"s_nop 1")
    a(f"v_add_f32 v{v}, v{v}, v{t}")

def code_prefetch(a, start_label, nbytes, vtmp, vdst, s0):
    n = (nbytes + 16383) // 16384
    l = a.newlabel("pc")
    a(f"s_getpc_b64 s[{s0}:{s0+1}]")
    a.label(l)
    a(f"s_add_u32 s{s0}, s{s0}, {start_label}-{l}")
    a(f"s_addc_u32 s{s0+1}, s{s0+1}, 0")
    a(f"v_lshlrev_b32 v{vtmp}, 6, v0")
    for i in range(n):
        if i: a(f"v_add_u32 v{vtmp}, 0x4000, v{vtmp}")
        a.vmem(f"global_load_dword v{vdst}, v{vtmp}, s[{s0}:{s0+1}]", tag="codepf")

def mfma16(d, a_, b, c=None):
    return f"v_mfma_f32_16x16x32_bf16 {d}, {a_}, {b}, {d if c is None else c}"

class Gaps:
    def __init__(self, n):
        self.n = n
        self.g = [[] for _ in range(n)]
    def put(self, i, item, front=False):
        if front: self.g[i].insert(0, item)
        else: self.g[i].append(item)
    def free(self, start=0, maxlen=0):
        for i in range(start, self.n):
            if len(self.g[i]) <= maxlen: return i
        return None
    def emit(self, a, mfmas, pre=()):
        assert len(mfmas) == self.n
        for p in pre: p(a)
        for m, items in zip(mfmas, self.g):
            a(m)
            for it in items: it(a)

def S(s):
    return lambda a: a(s)
def VM(s, tag=None):
    return lambda a: a.vmem(s, tag)
def LG(s, tag=None):
    return lambda a: a.lds(s, tag)
def WVM(tag):
    return lambda a: a.wait_vm(tag)
def WLG0():
    return lambda a: a.wait_lg0()

import os
PROFILE = int(os.environ.get("PROFILE", "0"))
WS_PROF = 0x80000
PROF_V = [31]
def prof_init(a, v):
    PROF_V[0] = v
    if PROFILE: a(f"v_mov_b32 v{v}, 0")
def prof_stamp(a, slot):
    if not PROFILE: return
    a("s_memrealtime s[92:93]")
    a("s_memtime s[94:95]")
    a("s_waitcnt lgkmcnt(0)")
    a(f"v_writelane_b32 v{PROF_V[0]}, s92, {slot}")
    a(f"v_writelane_b32 v{PROF_V[0]}, s94, {16+slot}")
def prof_flush(a, kidx, ws_srd, nslots, vt=250, wg="s2"):
    if not PROFILE: return
    l = a.newlabel("prof")
    a(f"v_cmp_gt_u32 vcc, 32, v0")
    a("s_and_saveexec_b64 s[92:93], vcc")
    a(f"s_cbranch_execz {l}")
    a(f"s_lshl_b32 s94, {wg}, 7")
    a(f"s_add_u32 s94, s94, {WS_PROF + kidx*65536}")
    a(f"v_lshlrev_b32 v{vt}, 2, v0")
    a(f"buffer_store_dword v{PROF_V[0]}, v{vt}, s[{ws_srd}:{ws_srd+3}], s94 offen")
    a.label(l)
    a("s_mov_b64 exec, s[92:93]")

class Sched:
    def __init__(self, n):
        self.n = n
        self.g = [[] for _ in range(n)]
    def kinds(self, i): return "".join(k for k, _ in self.g[i])
    def put(self, i, kind, item): self.g[i].append((kind, item))
    def can_v(self, i):
        k = self.kinds(i)
        if 'D' in k or 'E' in k: return False
        return len(k) < 2
    def can_l(self, i): return len(self.g[i]) == 0
    def place_vmem(self, fifo, positions):
        for p in positions:
            if not fifo: break
            pre = []
            while fifo and fifo[0][0] != 'D': pre.append(fifo.pop(0))
            if not fifo:
                for k, it in pre: self.put(p, k, it)
                break
            assert len(self.g[p]) == 0, (p, self.kinds(p))
            q = max(p - 1, 0)
            for k, it in pre:
                if p == 0: self.put(0, k, it)
                else: self.put(q, k, it)
            if p == 0 and pre: self.put(0, 'S', S("s_nop 0"))
            self.put(p, 'D', fifo.pop(0)[1])
    def place_lds(self, items, start=0, skip=()):
        i = start
        for it in items:
            while i < self.n and (not self.can_l(i) or i in skip): i += 1
            assert i < self.n, "no room for lds reads"
            self.put(i, 'L', it); i += 1
        return i
    def place_valu(self, stream, start=0, end=None, per_gap=2):
        end = self.n if end is None else end
        last = -10
        for i in range(start, end):
            cnt = 0
            while stream and cnt < per_gap:
                e = stream[0]; k = e[0]; mind = e[2] if len(e) > 2 else 0
                if i - last < mind: break
                if k in ('E', 'D'):
                    if len(self.g[i]) == 0: self.put(i, k, e[1]); stream.pop(0); last = i
                    break
                if not self.can_v(i): break
                self.put(i, k, e[1]); stream.pop(0); last = i; cnt += 1
    def emit(self, a, mfmas, pre=()):
        assert len(mfmas) == self.n
        for p in pre: p(a)
        for m, items in zip(mfmas, self.g):
            a(m)
            for k, it in items: it(a)
```

```python
from core import *

def gen_k0(name="mod_kernel"):
    a = Asm()
    kernel_header(a, name)
    a("s_cmp_ge_u32 s2, 48")
    a(f"s_cbranch_scc1 L_{name}_end")
    prof_init(a, 120)
    prof_stamp(a, 0)
    a(f"s_load_dwordx2 s[4:5], s[0:1], {KA['c']}")
    a(f"s_load_dwordx2 s[6:7], s[0:1], {KA['wmod']}")
    a(f"s_load_dwordx2 s[20:21], s[0:1], {KA['ws']}")
    a("s_waitcnt lgkmcnt(0)")
    srd(a, 8, 4, SZ['c']); srd(a, 12, 6, SZ['wmod']); srd(a, 16, 20, SZ['ws'])
    a("v_and_b32 v1, 7, v0")
    a("v_lshrrev_b32 v2, 3, v0")
    a("s_mov_b32 s22, 6144")
    a("v_mul_lo_u32 v3, v2, s22")
    a("v_lshl_add_u32 v3, v1, 4, v3")
    a("s_lshl_b32 s23, s2, 7")
    a("v_lshlrev_b32 v4, 2, v0")
    a.vmem("buffer_load_dword v5, v4, s[8:11], 0 offen", tag="c")
    for i in range(16):
        a.vmem(f"buffer_load_dwordx4 v[{32+4*i}:{35+4*i}], v3, s[12:15], s23 offen", tag=("w", i))
        a(f"s_add_u32 s23, s23, {32*6144}")
    a.wait_vm("c")
    a("v_lshlrev_b32 v6, 16, v5")
    a("v_and_b32 v7, 0xffff0000, v5")
    for r in (6, 7):
        a(f"v_mul_f32 v8, 0xbfb8aa3b, v{r}")
        a("v_exp_f32 v8, v8")
        a("s_nop 0")
        a("v_add_f32 v8, 1.0, v8")
        a("v_rcp_f32 v8, v8")
        a("s_nop 0")
        a(f"v_mul_f32 v{r}, v{r}, v8")
    a("v_cvt_pk_bf16_f32 v8, v6, v7")
    a("v_lshlrev_b32 v6, 16, v8")
    a("v_and_b32 v7, 0xffff0000, v8")
    a("v_lshlrev_b32 v9, 3, v0")
    a("ds_write_b64 v9, v[6:7]")
    a.wait_lg0()
    a("s_barrier")
    a("v_lshlrev_b32 v9, 2, v2")
    for i in range(16):
        a(f"ds_read_b32 v{12+i}, v9 offset:{i*128}")
    for j in range(8): a(f"v_mov_b32 v{100+j}, 0")
    a.wait_lg0()
    for i in range(16):
        a.wait_vm(("w", i))
        for d in range(4):
            w = 32 + 4*i + d
            a(f"v_lshlrev_b32 v10, 16, v{w}")
            a(f"v_and_b32 v11, 0xffff0000, v{w}")
            a(f"v_fmac_f32 v{100+2*d}, v{12+i}, v10")
            a(f"v_fmac_f32 v{101+2*d}, v{12+i}, v11")
    a("v_lshlrev_b32 v9, 8, v2")
    a("v_lshl_add_u32 v9, v1, 5, v9")
    a("ds_write_b128 v9, v[100:103] offset:2048")
    a("ds_write_b128 v9, v[104:107] offset:2064")
    a.wait_lg0()
    a("s_barrier")
    a("v_cmp_gt_u32 vcc, 64, v0")
    a("s_and_saveexec_b64 s[24:25], vcc")
    a(f"s_cbranch_execz L_{name}_end")
    a("v_lshlrev_b32 v9, 2, v0")
    for i in range(32):
        a(f"ds_read_b32 v{32+i}, v9 offset:{2048+i*256}")
    a.wait_lg0()
    for i in range(1, 32):
        a(f"v_add_f32 v32, v32, v{32+i}")
    round_bf16(a, 32, 32)
    a("s_lshl_b32 s23, s2, 8")
    a(f"s_add_u32 s23, s23, {WS_MOD}")
    a("buffer_store_dword v32, v9, s[16:19], s23 offen")
    laux = a.newlabel("L_aux")
    a("s_sub_u32 s24, s2, 24"); a("s_cmp_lt_u32 s24, 16"); a(f"s_cbranch_scc0 {laux}")
    a("s_lshr_b32 s25, s24, 3")
    a("s_and_b32 s24, s24, 7")
    a("v_add_f32 v33, 1.0, v32")
    a("v_cvt_pk_bf16_f32 v33, v33, v33")
    a("v_lshrrev_b32 v34, 16, v32")
    a("s_cmp_eq_u32 s25, 1")
    a("s_cselect_b64 s[26:27], -1, 0")
    a("v_cndmask_b32 v33, v34, v33, s[26:27]")
    a("s_lshl_b32 s24, s24, 11")
    a("s_xor_b32 s25, s25, 1"); a("s_lshl_b32 s25, s25, 4"); a("s_add_u32 s24, s24, s25")
    a(f"s_add_u32 s24, s24, {WS_AUX}")
    a("v_lshrrev_b32 v34, 5, v0"); a("v_lshlrev_b32 v34, 10, v34")
    a("v_bfe_u32 v35, v0, 3, 2"); a("v_lshl_add_u32 v34, v35, 8, v34")
    a("v_and_b32 v35, 7, v0"); a("v_lshl_add_u32 v34, v35, 1, v34")
    a("buffer_store_short v33, v34, s[16:19], s24 offen")
    a.label(laux)
    if PROFILE:
        a("s_waitcnt vmcnt(0)")
        prof_stamp(a, 1); prof_flush(a, 0, 16, 2, vt=121)
    a.label(f"L_{name}_end")
    a("s_endpgm")
    return a.text(), descriptor(name, 128, 128), (name, 48, 256, 16384)
```

```python
from core import *

STORE_KV = "sc1"

def gen_ln_rows(a, XR, nrows, modsa, modca, tmp):
    X = tmp
    S1 = tmp + 8; T = tmp + 9; M = tmp + 10; V = tmp + 11; D = tmp + 12; U = tmp+13
    for j in range(8):
        a(f"v_add_f32 v{modca+j}, 1.0, v{modca+j}")
        round_bf16(a, modca+j, modca+j)
    for xr in XR:
        for d in range(4):
            a(f"v_lshlrev_b32 v{X+2*d}, 16, v{xr+d}")
            a(f"v_and_b32 v{X+2*d+1}, 0xffff0000, v{xr+d}")
        a(f"v_add_f32 v{S1}, v{X}, v{X+1}")
        for j in range(2, 8): a(f"v_add_f32 v{S1}, v{S1}, v{X+j}")
        wave_allreduce_add(a, S1, T)
        a(f"v_mul_f32 v{S1}, 0x3b000000, v{S1}")
        a(f"v_sub_f32 v{D}, v{X}, v{S1}")
        a(f"v_mul_f32 v{V}, v{D}, v{D}")
        for j in range(1, 8):
            a(f"v_sub_f32 v{D}, v{X+j}, v{S1}")
            a(f"v_fmac_f32 v{V}, v{D}, v{D}")
        wave_allreduce_add(a, V, T)
        a(f"v_mul_f32 v{V}, 0x3b000000, v{V}")
        round_bf16(a, V, V)
        round_bf16(a, M, S1)
        a(f"v_add_f32 v{V}, 0x3727c5ac, v{V}")
        round_bf16(a, V, V)
        a(f"v_sqrt_f32 v{V}, v{V}")
        a("s_nop 0")
        round_bf16(a, V, V)
        a(f"v_rcp_f32 v{U}, v{V}")
        a("s_nop 0")
        for j in range(8):
            a(f"v_sub_f32 v{D}, v{X+j}, v{M}")
            round_bf16(a, D, D)
            a(f"v_mul_f32 v{T}, v{D}, v{U}")
            a(f"v_fma_f32 v{S1}, -v{T}, v{V}, v{D}")
            a(f"v_fmac_f32 v{T}, v{S1}, v{U}")
            round_bf16(a, T, T)
            a(f"v_mul_f32 v{T}, v{T}, v{modca+j}")
            round_bf16(a, T, T)
            a(f"v_add_f32 v{X+j}, v{T}, v{modsa+j}")
        for d in range(4):
            a(f"v_cvt_pk_bf16_f32 v{xr+d}, v{X+2*d}, v{X+2*d+1}")

def gen_k1(name="kv_kernel"):
    a = Asm()
    kernel_header(a, name)
    a("s_cmp_ge_u32 s2, 256")
    a(f"s_cbranch_scc1 L_{name}_end")
    prof_init(a, 31)
    prof_stamp(a, 0)
    a(f"s_load_dwordx2 s[4:5], s[0:1], {KA['x']}")
    a(f"s_load_dwordx2 s[6:7], s[0:1], {KA['ckv']}")
    a(f"s_load_dwordx4 s[8:11], s[0:1], {KA['wuk']}")
    a(f"s_load_dwordx2 s[12:13], s[0:1], {KA['ws']}")
    a("v_lshrrev_b32 v1, 6, v0")
    a("v_and_b32 v2, 63, v0")
    a("s_nop 0")
    a("v_readfirstlane_b32 s3, v1")
    a("s_waitcnt lgkmcnt(0)")
    SX, SC, SK, SV, SW = 16, 20, 24, 28, 32
    srd(a, SX, 4, SZ['x']); srd(a, SC, 6, SZ['ckv']); srd(a, SK, 8, SZ['wuk']); srd(a, SV, 10, SZ['wuv']); srd(a, SW, 12, SZ['ws'])
    a("s_and_b32 s36, s2, 7"); a("s_lshl_b32 s36, s36, 2"); a("s_lshr_b32 s37, s2, 3"); a("s_and_b32 s37, s37, 3"); a("s_add_u32 s36, s36, s37")
    a("s_lshr_b32 s37, s2, 5")
    LANE = 2
    V16 = 3
    DC = 96
    DW1 = 104
    TA = 108
    CR = 116
    DW2 = 4
    TB = 8
    t0, t1, t2, t3, t4 = 12, 13, 14, 15, 16
    a(f"v_lshlrev_b32 v{V16}, 4, v{LANE}")
    XR = [20, 24]; MSA = 64; MCA = 72
    a("s_lshl_b32 s38, s2, 3"); a("s_lshl_b32 s39, s3, 1"); a("s_add_u32 s38, s38, s39")
    a("s_lshl_b32 s39, s38, 10")
    a.vmem(f"buffer_load_dwordx4 v[{XR[0]}:{XR[0]+3}], v{V16}, s[{SX}:{SX+3}], s39 offen", "hx")
    a.vmem(f"buffer_load_dwordx4 v[{XR[1]}:{XR[1]+3}], v{V16}, s[{SX}:{SX+3}], s39 offen offset:1024", "hx")
    a(f"v_lshlrev_b32 v{t0}, 5, v{LANE}")
    a(f"s_mov_b32 s39, {WS_MOD}")
    a.vmem(f"buffer_load_dwordx4 v[{MSA}:{MSA+3}], v{t0}, s[{SW}:{SW+3}], s39 offen", "hx")
    a.vmem(f"buffer_load_dwordx4 v[{MSA+4}:{MSA+7}], v{t0}, s[{SW}:{SW+3}], s39 offen offset:16", "hx")
    a.vmem(f"buffer_load_dwordx4 v[{MCA}:{MCA+3}], v{t0}, s[{SW}:{SW+3}], s39 offen offset:2048", "hx")
    a.vmem(f"buffer_load_dwordx4 v[{MCA+4}:{MCA+7}], v{t0}, s[{SW}:{SW+3}], s39 offen offset:2064", "hx")
    a(f"v_lshrrev_b32 v{t0}, 3, v{LANE}")
    a(f"v_and_b32 v{t1}, 7, v{LANE}")
    a(f"v_lshrrev_b32 v{t2}, 1, v{t0}")
    a(f"v_xor_b32 v{t1}, v{t1}, v{t2}")
    a(f"v_lshlrev_b32 v{t1}, 4, v{t1}")
    a(f"v_lshl_add_u32 v{t1}, v{t0}, 10, v{t1}")
    a(f"v_xor_b32 v{t2}, 64, v{t1}")
    for p in range(8):
        a(f"v_add_u32 v{DC+p}, {p*8192 - (p & 3)*1024}, v{t2 if p & 1 else t1}")
    a(f"v_lshrrev_b32 v{t0}, 4, v{LANE}")
    a(f"v_and_b32 v{t1}, 15, v{LANE}")
    a(f"v_lshrrev_b32 v{t2}, 1, v{t1}")
    a(f"v_xor_b32 v{t2}, v{t2}, v{t0}")
    a(f"v_lshlrev_b32 v{t2}, 5, v{t2}")
    a(f"v_and_b32 v{t3}, 1, v{t1}")
    a(f"v_lshl_add_u32 v{t2}, v{t3}, 4, v{t2}")
    a(f"v_lshl_add_u32 v{t2}, v{t0}, 13, v{t2}")
    a(f"v_xor_b32 v{t3}, 128, v{t2}")
    for j in range(4):
        a(f"v_add_u32 v{DW1+j}, {j*4*8192 - j*1024}, v{t3 if j >= 2 else t2}")
    a(f"v_lshrrev_b32 v{t0}, 4, v{LANE}")
    a(f"v_bfe_u32 v{t1}, v{LANE}, 2, 2")
    a(f"v_and_b32 v{t2}, 3, v{LANE}")
    a(f"v_lshl_add_u32 v{t3}, v{t0}, 3, v{t1}")
    a(f"v_and_b32 v{t4}, 1, v{t0}")
    a(f"v_lshl_add_u32 v{t4}, v{t4}, 2, v{t1}")
    a(f"v_lshlrev_b32 v{t4}, 5, v{t4}")
    a(f"v_lshlrev_b32 v17, 8, v{t3}")
    a(f"v_lshl_add_u32 v17, v{t2}, 3, v17")
    for nb in range(8):
        a(f"v_xor_b32 v18, {nb*32}, v{t4}")
        a(f"v_add_u32 v{TA+nb}, v17, v18")
    a(f"v_lshrrev_b32 v{t4}, 1, v{t1}")
    a(f"v_and_b32 v18, 1, v{t0}")
    a(f"v_lshl_add_u32 v{t4}, v18, 1, v{t4}")
    a(f"v_lshlrev_b32 v{t4}, 5, v{t4}")
    a(f"v_lshlrev_b32 v17, 7, v{t3}")
    a(f"v_lshl_add_u32 v17, v{t2}, 3, v17")
    for nb in range(4):
        a(f"v_xor_b32 v18, {nb*32}, v{t4}")
        a(f"v_add_u32 v{TB+nb}, v17, v18")
    a(f"v_lshrrev_b32 v{t0}, 3, v{LANE}")
    a(f"v_and_b32 v{t1}, 7, v{LANE}")
    a(f"v_lshrrev_b32 v{t2}, 1, v{t1}")
    a(f"v_bfe_u32 v{t3}, v{t0}, 1, 1")
    a(f"v_xor_b32 v{t2}, v{t2}, v{t3}")
    a(f"v_lshlrev_b32 v{t2}, 5, v{t2}")
    a(f"v_and_b32 v{t3}, 1, v{t1}")
    a(f"v_lshl_add_u32 v{t2}, v{t3}, 4, v{t2}")
    a(f"v_lshl_add_u32 v{t2}, v{t0}, 13, v{t2}")
    a(f"v_xor_b32 v{t3}, 64, v{t2}")
    for j in range(4):
        a(f"v_add_u32 v{DW2+j}, {j*8*8192 - j*1024}, v{t3 if j & 1 else t2}")
    a(f"v_and_b32 v{t0}, 15, v{LANE}")
    a(f"v_lshrrev_b32 v{t1}, 4, v{LANE}")
    a(f"v_lshrrev_b32 v{t2}, 1, v{t0}")
    a(f"v_xor_b32 v{t1}, v{t1}, v{t2}")
    a(f"v_lshlrev_b32 v{t1}, 4, v{t1}")
    a(f"v_lshl_add_u32 v{t1}, v{t0}, 7, v{t1}")
    a("s_mul_i32 s40, s3, 24576"); a("s_add_u32 s40, s40, 65536")
    a(f"v_add_u32 v{CR}, s40, v{t1}")
    a(f"v_xor_b32 v{CR+1}, 64, v{CR}")
    a("s_lshl_b32 s41, s37, 18"); a("s_lshl_b32 s39, s3, 16"); a("s_add_u32 s41, s41, s39")
    a("s_lshl_b32 s42, s3, 17"); a("s_lshl_b32 s39, s36, 8"); a("s_add_u32 s42, s42, s39")
    a("s_lshl_b32 s43, s3, 18"); a("s_add_u32 s43, s43, s39")
    a("s_lshl_b32 s44, s3, 12")
    a("s_lshl_b32 s45, s36, 5"); a("s_lshl_b32 s39, s37, 2"); a("s_add_u32 s45, s45, s39"); a("s_add_u32 s45, s45, s3")
    a("s_lshl_b32 s45, s45, 15"); a(f"s_add_u32 s45, s45, {hex(WS_KV)}")

    a(f"s_mov_b32 s49, {QK_SCALE_HEX}")
    def dma_c(cc):
        it = []
        for half in range(2):
            grp = []
            grp.append(S(f"s_add_u32 m0, s40, {(cc % 3)*8192 + half*4096}"))
            for q in range(4):
                p = half*4 + q
                grp.append(VM(f"buffer_load_dwordx4 v{DC+p}, s[{SC}:{SC+3}], s46 offen offset:{q*1024} lds", ("c", cc)))
            it.append(grp)
        return S(f"s_add_u32 s46, s41, {cc*128}"), it
    def dma_w(st):
        slot = st & 3
        if st < 8:
            pre = S(f"s_add_u32 s47, s42, {st*64*8192}"); srdn = SK; V = DW1
        else:
            half = (st - 8) // 4; k = (st - 8) % 4
            pre = S(f"s_add_u32 s47, s43, {k*128*8192 + half*128}"); srdn = SV; V = DW2
        grp = [S(f"s_add_u32 m0, s44, {slot*16384}")]
        for j in range(4):
            grp.append(VM(f"buffer_load_dwordx4 v{V+j}, s[{srdn}:{srdn+3}], s47 offen offset:{j*1024} lds", ("w", st)))
        return pre, grp
    def run(items):
        for it in items: it(a)
    def rung(grp):
        grp[0](a); a("s_nop 0"); run(grp[1:])
    for i in range(3):
        pre, grps = dma_c(i); run([pre]); [rung(g) for g in grps]
        pre, grp = dma_w(i); run([pre]); rung(grp)
    pre, grp = dma_w(3); run([pre]); rung(grp)

    a.wait_vm("hx")
    gen_ln_rows(a, XR, 2, MSA, MCA, 80)
    a(f"v_lshrrev_b32 v{t0}, 2, v{LANE}")
    a(f"v_and_b32 v{t1}, 3, v{LANE}")
    a(f"v_lshlrev_b32 v{t0}, 10, v{t0}")
    a(f"v_lshl_add_u32 v{t0}, v{t1}, 8, v{t0}")
    a("s_lshr_b32 s39, s38, 4"); a("s_lshl_b32 s39, s39, 14")
    a("s_and_b32 s48, s38, 15"); a("s_lshl_b32 s48, s48, 4"); a("s_add_u32 s39, s39, s48")
    a(f"s_add_u32 s39, s39, {hex(WS_H)}")
    a.vmem(f"buffer_store_dwordx4 v[{XR[0]}:{XR[0]+3}], v{t0}, s[{SW}:{SW+3}], s39 offen", "hst")
    a.vmem(f"buffer_store_dwordx4 v[{XR[1]}:{XR[1]+3}], v{t0}, s[{SW}:{SW+3}], s39 offen offset:16", "hst")

    def ckv(kb, ks): return ar((ks*4 + kb)*4, 4)
    WB1 = [32, 64]
    def KA_(db, kb): return 128 + ((db >> 1)*4 + kb)*8 + (db & 1)*4
    WB2 = [32, 48]
    def VA_(base, kb, db): return base + ((kb >> 1)*4 + db)*8 + (kb & 1)*4
    VB = [64, 128]

    def treads1(ks):
        st, u = ks // 2, ks & 1
        it = []
        for db in range(8):
            for jh in range(2):
                r = WB1[ks & 1] + db*4 + jh*2
                it.append(LG(f"ds_read_b64_tr_b16 v[{r}:{r+1}], v{TA+db} offset:{(st & 3)*16384 + u*8192 + jh*1024}"))
        return it
    def creads(ks):
        cc, u = ks // 2, ks & 1
        return [LG(f"ds_read_b128 {ckv(kb, ks)}, v{CR+u} offset:{(cc % 3)*8192 + kb*2048}") for kb in range(4)]
    def treads2(g):
        st = 8 + g // 4; u = g & 3
        it = []
        for db in range(4):
            for jh in range(2):
                r = WB2[g & 1] + db*4 + jh*2
                it.append(LG(f"ds_read_b64_tr_b16 v[{r}:{r+1}], v{TB+db} offset:{(st & 3)*16384 + u*4096 + jh*512}"))
        return it

    prof_stamp(a, 1)
    a.wait_vm(("w", 0))
    a("s_barrier")
    run(treads1(0)); run(creads(0))
    a.wait_lg0()
    prof_stamp(a, 2)

    def fifo_c(cc):
        pre, grps = dma_c(cc)
        r = [('S', pre)]
        for grp in grps: r += [('S', grp[0])] + [('D', x) for x in grp[1:]]
        return r
    def fifo_w(st):
        pre, grp = dma_w(st)
        return [('S', pre), ('S', grp[0])] + [('D', x) for x in grp[1:]]
    fifo = []
    for ks in range(16):
        st, u = ks // 2, ks & 1
        mf = []
        for db in range(8):
            for kb in range(4):
                d = vr(KA_(db, kb), 4)
                mf.append(mfma16(d, vr(WB1[ks & 1] + db*4, 4), ckv(kb, ks), "0" if ks == 0 else None))
        g = Sched(32)
        pre = []
        if u == 1:
            pre = [WVM(("w", st+1)), S("s_barrier")]
            if st + 3 < 8: fifo += fifo_c(st+3)
            if st + 4 < 16: fifo += fifo_w(st+4)
        if ks + 1 < 16: pre.append(WVM(("c", (ks+1)//2)))
        g.place_vmem(fifo, [3, 8, 13, 18, 23, 28])
        nxt = treads1(ks+1) if ks < 15 else treads2(0)
        if ks < 15: nxt = nxt[:2] + creads(ks+1) + nxt[2:]
        g.place_lds(nxt)
        g.put(31, 'W', WLG0())
        g.emit(a, mf, pre)
    prof_stamp(a, 3)
    def k_epi():
        it = []
        for kb in range(4):
            for s_ in range(4):
                r = KA_(2*s_, kb)
                grp = []
                if s_ == 0: grp.append(('S', S(f"s_add_u32 s48, s45, {kb*4096}")))
                for q in range(8):
                    grp.append(('V', S(f"v_mul_f32 v{r+q}, s49, v{r+q}")))
                for q in range(4):
                    grp.append(('V', S(f"v_cvt_pk_bf16_f32 v{r+q}, v{r+2*q}, v{r+2*q+1}")))
                grp.append(('D', VM(f"buffer_store_dwordx4 v[{r}:{r+3}], v{V16}, s[{SW}:{SW+3}], s48 offen offset:{s_*1024} {STORE_KV}", "st")))
                it.append(grp)
        return it
    def v_epi(half):
        it = []
        for u_ in range(2):
            for db in range(4):
                r = VA_(VB[half], 2*u_, db)
                grp = []
                if db == 0: grp.append(('S', S(f"s_add_u32 s48, s45, {16384 + u_*8192 + half*4096}")))
                for q in range(4):
                    grp.append(('V', S(f"v_cvt_pk_bf16_f32 v{r+q}, v{r+2*q}, v{r+2*q+1}")))
                grp.append(('D', VM(f"buffer_store_dwordx4 v[{r}:{r+3}], v{V16}, s[{SW}:{SW+3}], s48 offen offset:{db*1024} {STORE_KV}", "st")))
                it.append(grp)
        return it
    epi = k_epi()
    for gk in range(32):
        half = gk // 16; ks = gk % 16; st = 8 + gk // 4; u = gk & 3
        if gk == 16: epi = epi + v_epi(0)
        mf = []
        for db in range(4):
            for kb in range(4):
                d = vr(VA_(VB[half], kb, db), 4)
                mf.append(mfma16(d, ckv(kb, ks), vr(WB2[gk & 1] + db*4, 4), "0" if ks == 0 else None))
        g = Sched(16)
        pre = []
        if u == 3 and st + 1 < 16:
            pre = [WVM(("w", st+1)), S("s_barrier")]
            if st + 4 < 16: fifo += fifo_w(st+4)
        g.place_vmem(fifo, [4])
        stream = []
        if epi and (half == 0 or (gk & 1) == 0): stream = epi.pop(0)
        stD = [e for e in stream if e[0] == 'D']; stV = [e for e in stream if e[0] != 'D']
        if stD: g.put(14, 'D', stD[0][1])
        if gk < 31: g.place_lds(treads2(gk+1))
        g.place_valu(stV, start=1, end=14, per_gap=2)
        assert not stV
        g.put(15, 'W', WLG0())
        g.emit(a, mf, pre)
    epi = [e for grp in epi for e in grp]
    epi = [(("st", e[1]) if e[0] == 'D' else e[1]) for e in epi]
    prof_stamp(a, 4)
    a("s_nop 7")
    vl = [(('st', e[1]) if e[0] == 'D' else e[1]) for grp in v_epi(1) for e in grp]
    for e in epi + vl:
        if isinstance(e, tuple):
            a("s_nop 0"); e[1](a)
        else: e(a)
    if PROFILE:
        prof_stamp(a, 5)
        a("s_waitcnt vmcnt(0)")
        prof_stamp(a, 6); prof_flush(a, 1, SW, 7, vt=20)
    a.label(f"L_{name}_end")
    a("s_endpgm")
    return a.text(), descriptor(name, 512, 256), (name, 256, 256, 163840)
```

```python
import sys, os
sys.path.insert(0, os.path.dirname(__file__))
from core import *
import importlib

HEADER = open("adaLN_cond__compressed_kv_cla__swiglu_ffn__prompt.s.ref").read().split("; Override launch")[0]

def build(parts, path):
    launches = [p[2] for p in parts]
    out = HEADER
    for (n, g, b, l) in launches:
        out += f"; @launch kernel={n} grid=({g},1,1) block=({b},1,1) lds={l}\n"
    out += '.amdgcn_target "amdgcn-amd-amdhsa--gfx950"\n.text\n'
    seen = set()
    for p in parts:
        if p[2][0] in seen: continue
        seen.add(p[2][0]); out += p[0]
    out += '.section .rodata,"a"\n'
    seen = set()
    for p in parts:
        if p[2][0] in seen: continue
        seen.add(p[2][0]); out += p[1]
    open(path, "w").write(out)
    print("wrote", path, len(out), "bytes")

if __name__ == "__main__":
    from k0_mod import gen_k0
    from k1_kv import gen_k1
    parts = ([gen_k0()] if os.environ.get("K0", "0") == "1" else []) + [gen_k1()]
    for modname, fn in (("k2_attn", "gen_k2"), ("k3_out", "gen_k3"), ("k4_gu", "gen_k4"), ("k5_down", "gen_k5")):
        if os.path.exists(os.path.join(os.path.dirname(__file__), modname + ".py")):
            m = importlib.import_module(modname)
            parts.append(getattr(m, fn)())
    build(parts, sys.argv[1] if len(sys.argv) > 1 else "k.s")
```

```python
import re

WS_MOD   = 0x0
WS_U12   = 0x4000
WS_AUX   = 0xC000
WS_STATS = 0x10000
WS_H     = 0x100000
WS_X1    = 0x300000
WS_Y     = 0x500000
WS_ACT   = 0x800000
WS_CTX   = 0x1000000
WS_KV    = 0x2000000
WS_SIZE  = 0x4000000

import struct as _st, math as _m
QK_SCALE = _m.log2(_m.e) / _m.sqrt(128.0)
QK_SCALE_HEX = hex(_st.unpack("<I", _st.pack("<f", QK_SCALE))[0])
KA = dict(x=0, ckv=8, wq=16, wuk=24, wuv=32, wo=40, bx=48, wg=56, wu=64, wd=72, c=80, wmod=88, out=96, dbg=104, ws=112)
SZ = dict(x=2048*512*2, ckv=2048*512*2, wq=512*4096*2, wuk=512*4096*2, wuv=512*4096*2, wo=4096*512*2,
          wg=512*1792*2, wu=512*1792*2, wd=1792*512*2, c=512*2, wmod=512*3072*2, out=2048*512*2, dbg=256, ws=WS_SIZE)

def vr(base, n=1, p="v"):
    return f"{p}{base}" if n == 1 else f"{p}[{base}:{base+n-1}]"
def ar(base, n=1): return vr(base, n, "a")
def sr(base, n=1): return vr(base, n, "s")

class Asm:
    def __init__(self):
        self.lines = []
        self.vm = []
        self.lg = []
        self.uid = 0
    def __call__(self, s):
        for l in s.split("\n"):
            l = l.strip()
            if not l: continue
            self.lines.append(l if l.endswith(":") or l.startswith(".") else "  " + l)
    def label(self, s): self.lines.append(s + ":")
    def comment(self, s): self.lines.append("  ; " + s)
    _gid = [0]
    def newlabel(self, p="L"):
        Asm._gid[0] += 1
        return f"{p}_{Asm._gid[0]}"
    def vmem(self, s, tag=None):
        self(s); self.vm.append(tag)
    def lds(self, s, tag=None):
        self(s); self.lg.append(tag)
    def vm_count_after(self, tag):
        idx = [i for i, t in enumerate(self.vm) if t == tag or (isinstance(t, (tuple, list, set)) and tag in t)]
        if not idx: return None
        return len(self.vm) - 1 - idx[-1]
    def wait_vm_str(self, tag):
        n = self.vm_count_after(tag)
        if n is None: return None
        k = min(n, 63)
        self.vm = self.vm[len(self.vm) - k:] if k else []
        return f"s_waitcnt vmcnt({k})"
    def wait_vm(self, tag):
        s = self.wait_vm_str(tag)
        if s: self(s)
    def wait_lg_str(self, tag):
        idx = [i for i, t in enumerate(self.lg) if t == tag]
        if not idx: return None
        n = len(self.lg) - 1 - idx[-1]
        k = min(n, 15)
        self.lg = self.lg[len(self.lg) - k:] if k else []
        return f"s_waitcnt lgkmcnt({k})"
    def wait_lg(self, tag):
        s = self.wait_lg_str(tag)
        if s: self(s)
    def wait_all(self):
        self("s_waitcnt vmcnt(0) lgkmcnt(0)"); self.vm = []; self.lg = []
    def wait_lg0(self):
        self("s_waitcnt lgkmcnt(0)"); self.lg = []
    def wait_vm0(self):
        self("s_waitcnt vmcnt(0)"); self.vm = []
    def text(self): return "\n".join(self.lines) + "\n"

def srd(a, s, ptr_s, size):
    a(f"s_mov_b32 s{s}, s{ptr_s}")
    a(f"s_and_b32 s{s+1}, s{ptr_s+1}, 0xffff")
    a(f"s_mov_b32 s{s+2}, {hex(size)}")
    a(f"s_mov_b32 s{s+3}, 0x20000")

def kernel_header(a, name):
    a(f".globl {name}")
    a(".p2align 8")
    a(f".type {name},@function")
    a(f"{name}:")

def descriptor(name, vgpr, accum, sgpr=96):
    return f""".p2align 6
.amdhsa_kernel {name}
  .amdhsa_next_free_vgpr {vgpr}
  .amdhsa_next_free_sgpr {sgpr}
  .amdhsa_accum_offset {accum}
  .amdhsa_group_segment_fixed_size 0
  .amdhsa_kernarg_size 120
  .amdhsa_user_sgpr_count 2
  .amdhsa_user_sgpr_kernarg_segment_ptr 1
  .amdhsa_system_sgpr_workgroup_id_x 1
.end_amdhsa_kernel
"""

def round_bf16(a, dst, src, tmp=None):
    a(f"v_cvt_pk_bf16_f32 v{dst}, v{src}, v{src}")
    a(f"v_lshlrev_b32 v{dst}, 16, v{dst}")

def wave_allreduce_add(a, v, t):
    a(f"s_nop 1")
    a(f"v_add_f32_dpp v{v}, v{v}, v{v} quad_perm:[1,0,3,2] row_mask:0xf bank_mask:0xf")
    a(f"s_nop 1")
    a(f"v_add_f32_dpp v{v}, v{v}, v{v} quad_perm:[2,3,0,1] row_mask:0xf bank_mask:0xf")
    a(f"s_nop 1")
    a(f"v_add_f32_dpp v{v}, v{v}, v{v} row_half_mirror row_mask:0xf bank_mask:0xf")
    a(f"s_nop 1")
    a(f"v_add_f32_dpp v{v}, v{v}, v{v} row_mirror row_mask:0xf bank_mask:0xf")
    a(f"v_mov_b32 v{t}, v{v}")
    a(f"s_nop 1")
    a(f"v_permlane16_swap_b32 v{v}, v{t}")
    a(f"s_nop 1")
    a(f"v_add_f32 v{v}, v{v}, v{t}")
    a(f"v_mov_b32 v{t}, v{v}")
    a(f"s_nop 1")
    a(f"v_permlane32_swap_b32 v{v}, v{t}")
    a(f"s_nop 1")
    a(f"v_add_f32 v{v}, v{v}, v{t}")

def code_prefetch(a, start_label, nbytes, vtmp, vdst, s0):
    n = (nbytes + 16383) // 16384
    l = a.newlabel("pc")
    a(f"s_getpc_b64 s[{s0}:{s0+1}]")
    a.label(l)
    a(f"s_add_u32 s{s0}, s{s0}, {start_label}-{l}")
    a(f"s_addc_u32 s{s0+1}, s{s0+1}, 0")
    a(f"v_lshlrev_b32 v{vtmp}, 6, v0")
    for i in range(n):
        if i: a(f"v_add_u32 v{vtmp}, 0x4000, v{vtmp}")
        a.vmem(f"global_load_dword v{vdst}, v{vtmp}, s[{s0}:{s0+1}]", tag="codepf")

def mfma16(d, a_, b, c=None):
    return f"v_mfma_f32_16x16x32_bf16 {d}, {a_}, {b}, {d if c is None else c}"

class Gaps:
    def __init__(self, n):
        self.n = n
        self.g = [[] for _ in range(n)]
    def put(self, i, item, front=False):
        if front: self.g[i].insert(0, item)
        else: self.g[i].append(item)
    def free(self, start=0, maxlen=0):
        for i in range(start, self.n):
            if len(self.g[i]) <= maxlen: return i
        return None
    def emit(self, a, mfmas, pre=()):
        assert len(mfmas) == self.n
        for p in pre: p(a)
        for m, items in zip(mfmas, self.g):
            a(m)
            for it in items: it(a)

def S(s):
    return lambda a: a(s)
def VM(s, tag=None):
    return lambda a: a.vmem(s, tag)
def LG(s, tag=None):
    return lambda a: a.lds(s, tag)
def WVM(tag):
    return lambda a: a.wait_vm(tag)
def WLG0():
    return lambda a: a.wait_lg0()

import os
PROFILE = int(os.environ.get("PROFILE", "0"))
WS_PROF = 0x80000
PROF_V = [31]
def prof_init(a, v):
    PROF_V[0] = v
    if PROFILE: a(f"v_mov_b32 v{v}, 0")
def prof_stamp(a, slot):
    if not PROFILE: return
    a("s_memrealtime s[92:93]")
    a("s_memtime s[94:95]")
    a("s_waitcnt lgkmcnt(0)")
    a(f"v_writelane_b32 v{PROF_V[0]}, s92, {slot}")
    a(f"v_writelane_b32 v{PROF_V[0]}, s94, {16+slot}")
def prof_flush(a, kidx, ws_srd, nslots, vt=250, wg="s2"):
    if not PROFILE: return
    l = a.newlabel("prof")
    a(f"v_cmp_gt_u32 vcc, 32, v0")
    a("s_and_saveexec_b64 s[92:93], vcc")
    a(f"s_cbranch_execz {l}")
    a(f"s_lshl_b32 s94, {wg}, 7")
    a(f"s_add_u32 s94, s94, {WS_PROF + kidx*65536}")
    a(f"v_lshlrev_b32 v{vt}, 2, v0")
    a(f"buffer_store_dword v{PROF_V[0]}, v{vt}, s[{ws_srd}:{ws_srd+3}], s94 offen")
    a.label(l)
    a("s_mov_b64 exec, s[92:93]")

class Sched:
    def __init__(self, n):
        self.n = n
        self.g = [[] for _ in range(n)]
    def kinds(self, i): return "".join(k for k, _ in self.g[i])
    def put(self, i, kind, item): self.g[i].append((kind, item))
    def can_v(self, i):
        k = self.kinds(i)
        if 'D' in k or 'E' in k: return False
        return len(k) < 2
    def can_l(self, i): return len(self.g[i]) == 0
    def place_vmem(self, fifo, positions):
        for p in positions:
            if not fifo: break
            pre = []
            while fifo and fifo[0][0] != 'D': pre.append(fifo.pop(0))
            if not fifo:
                for k, it in pre: self.put(p, k, it)
                break
            assert len(self.g[p]) == 0, (p, self.kinds(p))
            q = max(p - 1, 0)
            for k, it in pre:
                if p == 0: self.put(0, k, it)
                else: self.put(q, k, it)
            if p == 0 and pre: self.put(0, 'S', S("s_nop 0"))
            self.put(p, 'D', fifo.pop(0)[1])
    def place_lds(self, items, start=0, skip=()):
        i = start
        for it in items:
            while i < self.n and (not self.can_l(i) or i in skip): i += 1
            assert i < self.n, "no room for lds reads"
            self.put(i, 'L', it); i += 1
        return i
    def place_valu(self, stream, start=0, end=None, per_gap=2):
        end = self.n if end is None else end
        last = -10
        for i in range(start, end):
            cnt = 0
            while stream and cnt < per_gap:
                e = stream[0]; k = e[0]; mind = e[2] if len(e) > 2 else 0
                if i - last < mind: break
                if k in ('E', 'D'):
                    if len(self.g[i]) == 0: self.put(i, k, e[1]); stream.pop(0); last = i
                    break
                if not self.can_v(i): break
                self.put(i, k, e[1]); stream.pop(0); last = i; cnt += 1
    def emit(self, a, mfmas, pre=()):
        assert len(mfmas) == self.n
        for p in pre: p(a)
        for m, items in zip(mfmas, self.g):
            a(m)
            for k, it in items: it(a)


def prefetch_lines(a, key, srd_s, ptr_s, voff, vdst, soff_s, nwg, wg="s2", tag="pf"):
    size = SZ[key]
    share = (size // nwg + 127) // 128 * 128
    n = (share + 8191) // 8192
    srd(a, srd_s, ptr_s, size)
    a(f"s_mul_i32 s{soff_s}, {wg}, {share}")
    for i in range(n):
        a.vmem(f"buffer_load_dword v{vdst}, v{voff}, s[{srd_s}:{srd_s+3}], s{soff_s} offen", tag)
        if i + 1 < n: a(f"s_add_u32 s{soff_s}, s{soff_s}, 8192")

class EDF:
    def __init__(self): self.q = []
    def add(self, group, need, avail=-1, after=None): self.q.append(dict(g=list(group), need=need, avail=avail, started=False))
    def take(self, step, n):
        out = []; cnt = 0
        while cnt < n:
            cand = [x for x in self.q if x['avail'] <= step]
            if not cand: break
            st = [x for x in cand if x['started']]
            x = st[0] if st else min(cand, key=lambda y: y['need'])
            x['started'] = True
            while x['g'] and cnt < n:
                k, it = x['g'].pop(0); out.append((k, it))
                if k == 'D': cnt += 1
            while x['g'] and x['g'][0][0] != 'D' and not any(k == 'D' for k, _ in x['g']):
                out.append(x['g'].pop(0))
            if not x['g']: self.q.remove(x)
        return out
    def empty(self): return not self.q
```

```python
from core import *

STORE_KV = "sc1"

def gen_ln_rows(a, XR, nrows, modsa, modca, tmp):
    X = tmp
    S1 = tmp + 8; T = tmp + 9; M = tmp + 10; V = tmp + 11; D = tmp + 12; U = tmp+13
    for j in range(8):
        a(f"v_add_f32 v{modca+j}, 1.0, v{modca+j}")
        round_bf16(a, modca+j, modca+j)
    for xr in XR:
        for d in range(4):
            a(f"v_lshlrev_b32 v{X+2*d}, 16, v{xr+d}")
            a(f"v_and_b32 v{X+2*d+1}, 0xffff0000, v{xr+d}")
        a(f"v_add_f32 v{S1}, v{X}, v{X+1}")
        for j in range(2, 8): a(f"v_add_f32 v{S1}, v{S1}, v{X+j}")
        wave_allreduce_add(a, S1, T)
        a(f"v_mul_f32 v{S1}, 0x3b000000, v{S1}")
        a(f"v_sub_f32 v{D}, v{X}, v{S1}")
        a(f"v_mul_f32 v{V}, v{D}, v{D}")
        for j in range(1, 8):
            a(f"v_sub_f32 v{D}, v{X+j}, v{S1}")
            a(f"v_fmac_f32 v{V}, v{D}, v{D}")
        wave_allreduce_add(a, V, T)
        a(f"v_mul_f32 v{V}, 0x3b000000, v{V}")
        round_bf16(a, V, V)
        round_bf16(a, M, S1)
        a(f"v_add_f32 v{V}, 0x3727c5ac, v{V}")
        round_bf16(a, V, V)
        a(f"v_sqrt_f32 v{V}, v{V}")
        a("s_nop 0")
        round_bf16(a, V, V)
        a(f"v_rcp_f32 v{U}, v{V}")
        a("s_nop 0")
        for j in range(8):
            a(f"v_sub_f32 v{D}, v{X+j}, v{M}")
            round_bf16(a, D, D)
            a(f"v_mul_f32 v{T}, v{D}, v{U}")
            a(f"v_fma_f32 v{S1}, -v{T}, v{V}, v{D}")
            a(f"v_fmac_f32 v{T}, v{S1}, v{U}")
            round_bf16(a, T, T)
            a(f"v_mul_f32 v{T}, v{T}, v{modca+j}")
            round_bf16(a, T, T)
            a(f"v_add_f32 v{X+j}, v{T}, v{modsa+j}")
        for d in range(4):
            a(f"v_cvt_pk_bf16_f32 v{xr+d}, v{X+2*d}, v{X+2*d+1}")

def ln_stream(XR, SA, CA, base):
    q = []
    def V(s_, m=0): q.append(('V', S(s_), m))
    def E(s_, m=0): q.append(('E', S(s_), m))
    X = [base, base + 8]; T = base + 16
    S1 = [T, T+1]; S2 = [T+2, T+3]; TT = [T+4, T+5]; M = [T+6, T+7]; R = [T+8, T+9]; P = T + 10
    def rnd8(b):
        for d in range(4): V(f"v_cvt_pk_bf16_f32 v{P+d}, v{b+2*d}, v{b+2*d+1}")
        for d in range(4):
            V(f"v_lshlrev_b32 v{b+2*d}, 16, v{P+d}"); V(f"v_and_b32 v{b+2*d+1}, 0xffff0000, v{P+d}")
    for j in range(8): V(f"v_add_f32 v{CA+j}, 1.0, v{CA+j}")
    rnd8(CA)
    for r in range(2):
        for d in range(4):
            V(f"v_lshlrev_b32 v{X[r]+2*d}, 16, v{XR[r]+d}"); V(f"v_and_b32 v{X[r]+2*d+1}, 0xffff0000, v{XR[r]+d}")
    for r in range(2):
        V(f"v_add_f32 v{S1[r]}, v{X[r]}, v{X[r]+1}"); V(f"v_mul_f32 v{S2[r]}, v{X[r]}, v{X[r]}"); V(f"v_fmac_f32 v{S2[r]}, v{X[r]+1}, v{X[r]+1}")
    for j in range(2, 8):
        for r in range(2):
            V(f"v_add_f32 v{S1[r]}, v{S1[r]}, v{X[r]+j}"); V(f"v_fmac_f32 v{S2[r]}, v{X[r]+j}, v{X[r]+j}")
    regs = [S1[0], S2[0], S1[1], S2[1]]
    for dpp in ("quad_perm:[1,0,3,2]", "quad_perm:[2,3,0,1]", "row_half_mirror", "row_mirror"):
        for i, v in enumerate(regs): V(f"v_add_f32_dpp v{v}, v{v}, v{v} {dpp} row_mask:0xf bank_mask:0xf", 2 if i == 0 else 0)
    tmp = [P, P+1, P+2, P+3]
    for sw in ("v_permlane16_swap_b32", "v_permlane32_swap_b32"):
        for i, v in enumerate(regs): V(f"v_mov_b32 v{tmp[i]}, v{v}", 1 if i == 0 else 0)
        for i, v in enumerate(regs): V(f"{sw} v{v}, v{tmp[i]}", 2 if i == 0 else 0)
        for i, v in enumerate(regs): V(f"v_add_f32 v{v}, v{v}, v{tmp[i]}", 2 if i == 0 else 0)
    for r in range(2):
        V(f"v_mul_f32 v{S1[r]}, 0x3b000000, v{S1[r]}"); V(f"v_mul_f32 v{S2[r]}, 0x3b000000, v{S2[r]}")
    for r in range(2): V(f"v_fma_f32 v{S2[r]}, -v{S1[r]}, v{S1[r]}, v{S2[r]}")
    for r in range(2): V(f"v_max_f32 v{S2[r]}, 0, v{S2[r]}")
    V(f"v_cvt_pk_bf16_f32 v{P}, v{S1[0]}, v{S1[1]}"); V(f"v_cvt_pk_bf16_f32 v{P+1}, v{S2[0]}, v{S2[1]}")
    V(f"v_lshlrev_b32 v{M[0]}, 16, v{P}"); V(f"v_and_b32 v{M[1]}, 0xffff0000, v{P}")
    V(f"v_lshlrev_b32 v{S2[0]}, 16, v{P+1}"); V(f"v_and_b32 v{S2[1]}, 0xffff0000, v{P+1}")
    for r in range(2): V(f"v_add_f32 v{S2[r]}, 0x3727c5ac, v{S2[r]}")
    V(f"v_cvt_pk_bf16_f32 v{P}, v{S2[0]}, v{S2[1]}")
    V(f"v_lshlrev_b32 v{S2[0]}, 16, v{P}"); V(f"v_and_b32 v{S2[1]}, 0xffff0000, v{P}")
    for r in range(2): E(f"v_sqrt_f32 v{S2[r]}, v{S2[r]}", 1)
    V(f"v_cvt_pk_bf16_f32 v{P}, v{S2[0]}, v{S2[1]}", 1)
    V(f"v_lshlrev_b32 v{S2[0]}, 16, v{P}"); V(f"v_and_b32 v{S2[1]}, 0xffff0000, v{P}")
    for r in range(2): E(f"v_rcp_f32 v{R[r]}, v{S2[r]}", 1)
    for r in range(2):
        for j in range(8): V(f"v_sub_f32 v{X[r]+j}, v{X[r]+j}, v{M[r]}", 1 if (r == 0 and j == 0) else 0)
        rnd8(X[r])
        for j in range(8): V(f"v_mul_f32 v{X[r]+j}, v{X[r]+j}, v{R[r]}")
        rnd8(X[r])
        for j in range(8): V(f"v_mul_f32 v{X[r]+j}, v{X[r]+j}, v{CA+j}")
        rnd8(X[r])
        for j in range(8): V(f"v_add_f32 v{X[r]+j}, v{X[r]+j}, v{SA+j}")
        for d in range(4): V(f"v_cvt_pk_bf16_f32 v{XR[r]+d}, v{X[r]+2*d}, v{X[r]+2*d+1}")
    return q

def gen_k1(name="kv_kernel"):
    a = Asm()
    kernel_header(a, name)
    a("s_cmp_ge_u32 s2, 256")
    a(f"s_cbranch_scc1 L_{name}_end")
    prof_init(a, 31)
    prof_stamp(a, 0)
    a(f"s_load_dwordx2 s[4:5], s[0:1], {KA['x']}")
    a(f"s_load_dwordx2 s[6:7], s[0:1], {KA['ckv']}")
    a(f"s_load_dwordx4 s[8:11], s[0:1], {KA['wuk']}")
    a(f"s_load_dwordx2 s[12:13], s[0:1], {KA['ws']}")
    a(f"s_load_dwordx4 s[52:55], s[0:1], {KA['c']}")
    a(f"s_load_dwordx2 s[56:57], s[0:1], {KA['dbg']}")
    a(f"s_load_dwordx2 s[58:59], s[0:1], {KA['wq']}")
    a("v_lshrrev_b32 v1, 6, v0")
    a("v_and_b32 v2, 63, v0")
    a("s_nop 0")
    a("v_readfirstlane_b32 s3, v1")
    a("s_waitcnt lgkmcnt(0)")
    SX, SC, SK, SV, SW = 16, 20, 24, 28, 32
    srd(a, SX, 4, SZ['x']); srd(a, SC, 6, SZ['ckv']); srd(a, SK, 8, SZ['wuk']); srd(a, SV, 10, SZ['wuv']); srd(a, SW, 12, SZ['ws'])
    a("s_and_b32 s36, s2, 7"); a("s_lshl_b32 s36, s36, 2"); a("s_lshr_b32 s37, s2, 3"); a("s_and_b32 s37, s37, 3"); a("s_add_u32 s36, s36, s37")
    a("s_lshr_b32 s37, s2, 5")
    LANE = 2
    V16 = 3
    DC = 96
    DW1 = 104
    TA = 108
    CR = 116
    DW2 = 4
    TB = 8
    t0, t1, t2, t3, t4 = 12, 13, 14, 15, 16
    a(f"v_lshlrev_b32 v{V16}, 4, v{LANE}")
    SCC_, SMD, SDB, SPF = 60, 64, 68, 72
    srd(a, SCC_, 52, SZ['c']); srd(a, SMD, 54, SZ['wmod']); srd(a, SDB, 56, SZ['dbg'])
    MW, MC, MA_, MT = 32, 48, 52, 60
    lm1 = a.newlabel("L_m1")
    a("s_cmp_ge_u32 s2, 192"); a(f"s_cbranch_scc1 {lm1}")
    a(f"v_lshrrev_b32 v{t0}, 1, v0")
    a(f"v_lshlrev_b32 v{t1}, 1, v{t0}")
    for i in range(4): a(f"buffer_load_ushort v{MC+i}, v{t1}, s[{SCC_}:{SCC_+3}], 0 offen offset:{256*i}")
    a(f"v_mul_u32_u24 v{t1}, 6144, v{t0}"); a(f"v_and_b32 v{t2}, 1, v0"); a(f"v_lshl_add_u32 v{t1}, v{t2}, 4, v{t1}")
    a("s_lshl_b32 s39, s2, 5")
    for i in range(4):
        a(f"buffer_load_dwordx4 v[{MW+4*i}:{MW+4*i+3}], v{t1}, s[{SMD}:{SMD+3}], s39 offen")
        if i < 3: a(f"s_add_u32 s39, s39, {128*6144}")
    a.label(lm1)
    a("s_lshl_b32 s39, s2, 14"); a("s_lshl_b32 s50, s3, 12"); a("s_add_u32 s39, s39, s50")
    a(f"s_add_u32 s{SPF}, s58, s39"); a(f"s_addc_u32 s{SPF+1}, s59, 0"); a(f"s_and_b32 s{SPF+1}, s{SPF+1}, 0xffff")
    a(f"s_mov_b32 s{SPF+2}, 4096"); a(f"s_mov_b32 s{SPF+3}, 0x20000")
    XR = [192, 196]; MSA = 200; MCA = 208
    a("s_lshl_b32 s38, s2, 3"); a("s_lshl_b32 s39, s3, 1"); a("s_add_u32 s38, s38, s39")
    a(f"v_lshrrev_b32 v{t0}, 3, v{LANE}")
    a(f"v_and_b32 v{t1}, 7, v{LANE}")
    a(f"v_lshrrev_b32 v{t2}, 1, v{t0}")
    a(f"v_xor_b32 v{t1}, v{t1}, v{t2}")
    a(f"v_lshlrev_b32 v{t1}, 4, v{t1}")
    a(f"v_lshl_add_u32 v{t1}, v{t0}, 10, v{t1}")
    a(f"v_xor_b32 v{t2}, 64, v{t1}")
    for p in range(8):
        a(f"v_add_u32 v{DC+p}, {p*8192 - (p & 3)*1024}, v{t2 if p & 1 else t1}")
    a(f"v_lshrrev_b32 v{t0}, 4, v{LANE}")
    a(f"v_and_b32 v{t1}, 15, v{LANE}")
    a(f"v_lshrrev_b32 v{t2}, 1, v{t1}")
    a(f"v_xor_b32 v{t2}, v{t2}, v{t0}")
    a(f"v_lshlrev_b32 v{t2}, 5, v{t2}")
    a(f"v_and_b32 v{t3}, 1, v{t1}")
    a(f"v_lshl_add_u32 v{t2}, v{t3}, 4, v{t2}")
    a(f"v_lshl_add_u32 v{t2}, v{t0}, 13, v{t2}")
    a(f"v_xor_b32 v{t3}, 128, v{t2}")
    for j in range(4):
        a(f"v_add_u32 v{DW1+j}, {j*4*8192 - j*1024}, v{t3 if j >= 2 else t2}")
    a(f"v_lshrrev_b32 v{t0}, 4, v{LANE}")
    a(f"v_bfe_u32 v{t1}, v{LANE}, 2, 2")
    a(f"v_and_b32 v{t2}, 3, v{LANE}")
    a(f"v_lshl_add_u32 v{t3}, v{t0}, 3, v{t1}")
    a(f"v_and_b32 v{t4}, 1, v{t0}")
    a(f"v_lshl_add_u32 v{t4}, v{t4}, 2, v{t1}")
    a(f"v_lshlrev_b32 v{t4}, 5, v{t4}")
    a(f"v_lshlrev_b32 v17, 8, v{t3}")
    a(f"v_lshl_add_u32 v17, v{t2}, 3, v17")
    for nb in range(8):
        a(f"v_xor_b32 v18, {nb*32}, v{t4}")
        a(f"v_add_u32 v{TA+nb}, v17, v18")
    a(f"v_lshrrev_b32 v{t4}, 1, v{t1}")
    a(f"v_and_b32 v18, 1, v{t0}")
    a(f"v_lshl_add_u32 v{t4}, v18, 1, v{t4}")
    a(f"v_lshlrev_b32 v{t4}, 5, v{t4}")
    a(f"v_lshlrev_b32 v17, 7, v{t3}")
    a(f"v_lshl_add_u32 v17, v{t2}, 3, v17")
    for nb in range(4):
        a(f"v_xor_b32 v18, {nb*32}, v{t4}")
        a(f"v_add_u32 v{TB+nb}, v17, v18")
    a(f"v_lshrrev_b32 v{t0}, 3, v{LANE}")
    a(f"v_and_b32 v{t1}, 7, v{LANE}")
    a(f"v_lshrrev_b32 v{t2}, 1, v{t1}")
    a(f"v_bfe_u32 v{t3}, v{t0}, 1, 1")
    a(f"v_xor_b32 v{t2}, v{t2}, v{t3}")
    a(f"v_lshlrev_b32 v{t2}, 5, v{t2}")
    a(f"v_and_b32 v{t3}, 1, v{t1}")
    a(f"v_lshl_add_u32 v{t2}, v{t3}, 4, v{t2}")
    a(f"v_lshl_add_u32 v{t2}, v{t0}, 13, v{t2}")
    a(f"v_xor_b32 v{t3}, 64, v{t2}")
    for j in range(4):
        a(f"v_add_u32 v{DW2+j}, {j*8*8192 - j*1024}, v{t3 if j & 1 else t2}")
    a(f"v_and_b32 v{t0}, 15, v{LANE}")
    a(f"v_lshrrev_b32 v{t1}, 4, v{LANE}")
    a(f"v_lshrrev_b32 v{t2}, 1, v{t0}")
    a(f"v_xor_b32 v{t1}, v{t1}, v{t2}")
    a(f"v_lshlrev_b32 v{t1}, 4, v{t1}")
    a(f"v_lshl_add_u32 v{t1}, v{t0}, 7, v{t1}")
    a("s_mul_i32 s40, s3, 24576"); a("s_add_u32 s40, s40, 65536")
    a(f"v_add_u32 v{CR}, s40, v{t1}")
    a(f"v_xor_b32 v{CR+1}, 64, v{CR}")
    a("s_lshl_b32 s41, s37, 18"); a("s_lshl_b32 s39, s3, 16"); a("s_add_u32 s41, s41, s39")
    a("s_lshl_b32 s42, s3, 17"); a("s_lshl_b32 s39, s36, 8"); a("s_add_u32 s42, s42, s39")
    a("s_lshl_b32 s43, s3, 18"); a("s_add_u32 s43, s43, s39")
    a("s_lshl_b32 s44, s3, 12")
    a("s_lshl_b32 s45, s36, 5"); a("s_lshl_b32 s39, s37, 2"); a("s_add_u32 s45, s45, s39"); a("s_add_u32 s45, s45, s3")
    a("s_lshl_b32 s45, s45, 15"); a(f"s_add_u32 s45, s45, {hex(WS_KV)}")

    a(f"s_mov_b32 s49, {QK_SCALE_HEX}")
    def dma_c(cc):
        it = []
        for half in range(2):
            grp = []
            grp.append(S(f"s_add_u32 m0, s40, {(cc % 3)*8192 + half*4096}"))
            for q in range(4):
                p = half*4 + q
                grp.append(VM(f"buffer_load_dwordx4 v{DC+p}, s[{SC}:{SC+3}], s46 offen offset:{q*1024} lds", ("c", cc)))
            it.append(grp)
        return S(f"s_add_u32 s46, s41, {cc*128}"), it
    def dma_w(st):
        slot = st & 3
        if st < 8:
            pre = S(f"s_add_u32 s47, s42, {st*64*8192}"); srdn = SK; V = DW1
        else:
            half = (st - 8) // 4; k = (st - 8) % 4
            pre = S(f"s_add_u32 s47, s43, {k*128*8192 + half*128}"); srdn = SV; V = DW2
        grp = [S(f"s_add_u32 m0, s44, {slot*16384}")]
        for j in range(4):
            grp.append(VM(f"buffer_load_dwordx4 v{V+j}, s[{srdn}:{srdn+3}], s47 offen offset:{j*1024} lds", ("w", st)))
        return pre, grp
    def run(items):
        for it in items: it(a)
    def rung(grp):
        grp[0](a); a("s_nop 0"); run(grp[1:])
    for i in range(2):
        pre, grps = dma_c(i); run([pre]); [rung(g) for g in grps]
        pre, grp = dma_w(i); run([pre]); rung(grp)
    for i in (2, 3):
        pre, grp = dma_w(i); run([pre]); rung(grp)
    nburst = len(a.vm)
    lm2 = a.newlabel("L_m2")
    a("s_cmp_ge_u32 s2, 192"); a(f"s_cbranch_scc1 {lm2}")
    a(f"s_waitcnt vmcnt({nburst})")
    for i in range(4):
        r = MC + i
        a(f"v_lshlrev_b32 v{r}, 16, v{r}")
        a(f"v_mul_f32 v{MT}, 0xbfb8aa3b, v{r}"); a(f"v_exp_f32 v{MT}, v{MT}"); a("s_nop 0")
        a(f"v_add_f32 v{MT}, 1.0, v{MT}"); a(f"v_rcp_f32 v{MT}, v{MT}"); a("s_nop 0")
        a(f"v_mul_f32 v{r}, v{r}, v{MT}")
        round_bf16(a, r, r)
    for i in range(4):
        for d in range(4):
            w = MW + 4*i + d
            a(f"v_lshlrev_b32 v{MT}, 16, v{w}"); a(f"v_and_b32 v{MT+1}, 0xffff0000, v{w}")
            if i == 0:
                a(f"v_mul_f32 v{MA_+2*d}, v{MC}, v{MT}"); a(f"v_mul_f32 v{MA_+2*d+1}, v{MC}, v{MT+1}")
            else:
                a(f"v_fmac_f32 v{MA_+2*d}, v{MC+i}, v{MT}"); a(f"v_fmac_f32 v{MA_+2*d+1}, v{MC+i}, v{MT+1}")
    for dpp in ("quad_perm:[2,3,0,1]", "row_ror:4", "row_ror:8"):
        for j in range(8): a(f"v_add_f32_dpp v{MA_+j}, v{MA_+j}, v{MA_+j} {dpp} row_mask:0xf bank_mask:0xf")
    for sw in ("v_permlane16_swap_b32", "v_permlane32_swap_b32"):
        for j in range(8): a(f"v_mov_b32 v{MW+j}, v{MA_+j}")
        a("s_nop 0")
        for j in range(8): a(f"{sw} v{MA_+j}, v{MW+j}")
        a("s_nop 0")
        for j in range(8): a(f"v_add_f32 v{MA_+j}, v{MA_+j}, v{MW+j}")
    SCR = 65536 + 2*8192
    a(f"v_and_b32 v{t0}, 1, v{LANE}"); a(f"v_lshlrev_b32 v{t0}, 5, v{t0}"); a("s_lshl_b32 s39, s3, 6"); a(f"s_add_u32 s39, s39, {SCR}")
    a(f"v_add_u32 v{t0}, s39, v{t0}")
    lw = a.newlabel("L_mw")
    a(f"v_cmp_gt_u32 vcc, 2, v{LANE}"); a("s_and_saveexec_b64 s[50:51], vcc"); a(f"s_cbranch_execz {lw}")
    a(f"ds_write_b128 v{t0}, v[{MA_}:{MA_+3}]"); a(f"ds_write_b128 v{t0}, v[{MA_+4}:{MA_+7}] offset:16")
    a.label(lw); a("s_mov_b64 exec, s[50:51]")
    a("s_waitcnt lgkmcnt(0)"); a("s_barrier")
    lf = a.newlabel("L_mf")
    a("s_cmp_lg_u32 s3, 0"); a(f"s_cbranch_scc1 {lf}")
    a(f"v_lshlrev_b32 v{t0}, 2, v{LANE}"); a(f"v_add_u32 v{t1}, {SCR}, v{t0}")
    for w in range(4): a(f"ds_read_b32 v{MW+w}, v{t1} offset:{64*w}")
    a("s_waitcnt lgkmcnt(0)")
    a(f"v_add_f32 v{MW}, v{MW}, v{MW+1}"); a(f"v_add_f32 v{MW+2}, v{MW+2}, v{MW+3}"); a(f"v_add_f32 v{MW}, v{MW}, v{MW+2}")
    round_bf16(a, MW, MW)
    a(f"v_cmp_gt_u32 vcc, 16, v{LANE}"); a("s_and_saveexec_b64 s[50:51], vcc")
    lx = a.newlabel("L_mx")
    a(f"s_cbranch_execz {lx}")
    a("s_lshl_b32 s39, s2, 6"); a(f"s_add_u32 s39, s39, {WS_MOD}")
    a(f"buffer_store_dword v{MW}, v{t0}, s[{SW}:{SW+3}], s39 offen sc1")
    a("s_sub_u32 s39, s2, 96"); a("s_cmp_lt_u32 s39, 64"); a(f"s_cbranch_scc0 {lx}")
    a("s_lshr_b32 s48, s39, 5")
    a(f"v_add_f32 v{MW+1}, 1.0, v{MW}"); a(f"v_cvt_pk_bf16_f32 v{MW+1}, v{MW+1}, v{MW+1}")
    a(f"v_lshrrev_b32 v{MW+2}, 16, v{MW}")
    a("s_cmp_eq_u32 s48, 1"); a("s_cselect_b64 s[62:63], -1, 0") if False else None
    a("s_cmp_eq_u32 s48, 1"); a("s_cselect_b64 vcc, -1, 0")
    a(f"v_cndmask_b32 v{MW+1}, v{MW+2}, v{MW+1}, vcc")
    a("s_and_b32 s39, s39, 31"); a("s_lshl_b32 s39, s39, 4"); a(f"v_add_u32 v{t1}, s39, v{LANE}")
    a(f"v_lshrrev_b32 v{t2}, 5, v{t1}"); a(f"v_lshlrev_b32 v{t2}, 10, v{t2}")
    a(f"v_bfe_u32 v{t3}, v{t1}, 3, 2"); a(f"v_lshl_add_u32 v{t2}, v{t3}, 8, v{t2}")
    a(f"v_and_b32 v{t3}, 7, v{t1}"); a(f"v_lshl_add_u32 v{t2}, v{t3}, 1, v{t2}")
    a("s_xor_b32 s48, s48, 1"); a("s_lshl_b32 s48, s48, 4"); a(f"s_add_u32 s48, s48, {WS_AUX}")
    a(f"buffer_store_short v{MW+1}, v{t2}, s[{SW}:{SW+3}], s48 offen")
    a.label(lx); a("s_mov_b64 exec, s[50:51]")
    a.label(lf)
    a.label(lm2)
    pre, grps = dma_c(2); run([pre]); [rung(g) for g in grps]
    VZ, VL0, VPO, VPF = 19, 28, 29, 30
    a(f"v_mov_b32 v{VZ}, 0")
    a(f"v_cmp_eq_u32 vcc, 0, v{LANE}"); a(f"v_mov_b32 v{VL0}, 0x1000"); a("s_nop 0"); a(f"v_cndmask_b32 v{VL0}, v{VL0}, v{VZ}, vcc")
    a(f"v_and_b32 v{VPF}, 3, v{LANE}"); a(f"v_lshlrev_b32 v{VPF}, 7, v{VPF}")

    def ckv(kb, ks): return ar((ks*4 + kb)*4, 4)
    WB1 = [32, 64]
    def KA_(db, kb): return 128 + ((db >> 1)*4 + kb)*8 + (db & 1)*4
    WB2 = [32, 48]
    def VA_(base, kb, db): return base + ((kb >> 1)*4 + db)*8 + (kb & 1)*4
    VB = [64, 128]

    def treads1(ks):
        st, u = ks // 2, ks & 1
        it = []
        for db in range(8):
            for jh in range(2):
                r = WB1[ks & 1] + db*4 + jh*2
                it.append(LG(f"ds_read_b64_tr_b16 v[{r}:{r+1}], v{TA+db} offset:{(st & 3)*16384 + u*8192 + jh*1024}"))
        return it
    def creads(ks):
        cc, u = ks // 2, ks & 1
        return [LG(f"ds_read_b128 {ckv(kb, ks)}, v{CR+u} offset:{(cc % 3)*8192 + kb*2048}") for kb in range(4)]
    def treads2(g):
        st = 8 + g // 4; u = g & 3
        it = []
        for db in range(4):
            for jh in range(2):
                r = WB2[g & 1] + db*4 + jh*2
                it.append(LG(f"ds_read_b64_tr_b16 v[{r}:{r+1}], v{TB+db} offset:{(st & 3)*16384 + u*4096 + jh*512}"))
        return it

    prof_stamp(a, 1)
    a.wait_vm(("w", 0))
    a("s_barrier")
    run(treads1(0)); run(creads(0))
    a.wait_lg0()
    prof_stamp(a, 2)

    def fifo_c(cc):
        pre, grps = dma_c(cc)
        r = [('S', pre)]
        for grp in grps: r += [('S', grp[0])] + [('D', x) for x in grp[1:]]
        return r
    def fifo_w(st):
        pre, grp = dma_w(st)
        return [('S', pre), ('S', grp[0])] + [('D', x) for x in grp[1:]]
    fifo = []
    for ks in range(16):
        st, u = ks // 2, ks & 1
        mf = []
        for db in range(8):
            for kb in range(4):
                d = vr(KA_(db, kb), 4)
                mf.append(mfma16(d, vr(WB1[ks & 1] + db*4, 4), ckv(kb, ks), "0" if ks == 0 else None))
        g = Sched(32)
        pre = []
        if u == 1:
            pre = [WVM(("w", st+1)), S("s_barrier")]
            if st + 3 < 8: fifo += fifo_c(st+3)
            if st + 4 < 16: fifo += fifo_w(st+4)
        if ks + 1 < 16: pre.append(WVM(("c", (ks+1)//2)))
        if ks == 4:
            def signal(a_):
                l_ = a_.newlabel("L_sig")
                a_("s_cmp_lt_u32 s2, 64"); a_(f"s_cbranch_scc0 {l_}"); a_("s_cmp_eq_u32 s3, 0"); a_(f"s_cbranch_scc0 {l_}")
                a_(f"v_mov_b32 v{VPO}, 1")
                a_(f"buffer_atomic_add v{VPO}, v{VL0}, s[{SDB}:{SDB+3}], 0 offen sc1")
                a_.label(l_)
            pre.append(signal)
        g.place_vmem(fifo, [3, 8, 13, 18, 23, 28])
        nxt = treads1(ks+1) if ks < 15 else treads2(0)
        if ks < 15: nxt = nxt[:2] + creads(ks+1) + nxt[2:]
        g.place_lds(nxt)
        g.put(31, 'W', WLG0())
        g.emit(a, mf, pre)
    prof_stamp(a, 3)
    def k_epi():
        it = []
        for s_ in (3, 2, 1, 0):
            for kb in range(4):
                r = KA_(2*s_, kb)
                grp = [('S', S(f"s_add_u32 s48, s45, {kb*4096 + s_*1024}"))]
                for q in range(8):
                    grp.append(('V', S(f"v_mul_f32 v{r+q}, s49, v{r+q}")))
                for q in range(4):
                    grp.append(('V', S(f"v_cvt_pk_bf16_f32 v{r+q}, v{r+2*q}, v{r+2*q+1}")))
                grp.append(('D', VM(f"buffer_store_dwordx4 v[{r}:{r+3}], v{V16}, s[{SW}:{SW+3}], s48 offen {STORE_KV}", "st")))
                it.append(grp)
        return it
    def v_epi(half):
        it = []
        for u_ in range(2):
            for db in range(4):
                r = VA_(VB[half], 2*u_, db)
                grp = []
                if db == 0: grp.append(('S', S(f"s_add_u32 s48, s45, {16384 + u_*8192 + half*4096}")))
                for q in range(4):
                    grp.append(('V', S(f"v_cvt_pk_bf16_f32 v{r+q}, v{r+2*q}, v{r+2*q+1}")))
                grp.append(('D', VM(f"buffer_store_dwordx4 v[{r}:{r+3}], v{V16}, s[{SW}:{SW+3}], s48 offen offset:{db*1024} {STORE_KV}", "st")))
                it.append(grp)
        return it
    epi = k_epi()
    lnq = ln_stream(XR, MSA, MCA, 216)
    def poll_check(a_):
        a_.wait_vm("poll")
        ok = a_.newlabel("L_pok"); sp = a_.newlabel("L_psp")
        a_(f"v_readfirstlane_b32 s50, v{VPO}"); a_("s_mov_b32 s51, 0"); a_("s_nop 2")
        a_("s_cmp_ge_u32 s50, 64"); a_(f"s_cbranch_scc1 {ok}")
        a_.label(sp)
        a_(f"buffer_load_dword v{VPO}, v{VZ}, s[{SDB}:{SDB+3}], 0 offen sc1"); a_("s_waitcnt vmcnt(0)")
        a_(f"v_readfirstlane_b32 s50, v{VPO}"); a_("s_add_u32 s51, s51, 1"); a_("s_nop 2")
        a_("s_cmp_ge_u32 s50, 64"); a_(f"s_cbranch_scc1 {ok}")
        a_("s_cmp_lt_u32 s51, 0x40000"); a_(f"s_cbranch_scc1 {sp}")
        a_.label(ok)
    for gk in range(32):
        half = gk // 16; ks = gk % 16; st = 8 + gk // 4; u = gk & 3
        if gk == 16: epi = epi + v_epi(0)
        mf = []
        for db in range(4):
            for kb in range(4):
                d = vr(VA_(VB[half], kb, db), 4)
                mf.append(mfma16(d, ckv(kb, ks), vr(WB2[gk & 1] + db*4, 4), "0" if ks == 0 else None))
        g = Sched(16)
        pre = []
        if u == 3 and st + 1 < 16:
            pre = [WVM(("w", st+1)), S("s_barrier")]
            if st + 4 < 16: fifo += fifo_w(st+4)
        g.place_vmem(fifo, [4])
        if gk == 5: g.put(9, 'D', VM(f"buffer_load_dword v{VPO}, v{VZ}, s[{SDB}:{SDB+3}], 0 offen sc1", "poll"))
        elif gk < 16 and gk % 2 == 0:
            g.put(9, 'D', VM(f"buffer_load_dword v31, v{VPF}, s[{SPF}:{SPF+3}], 0 offen offset:{(gk // 2)*512}", "pf") if not PROFILE else
                          VM(f"buffer_load_dword v18, v{VPF}, s[{SPF}:{SPF+3}], 0 offen offset:{(gk // 2)*512}", "pf"))
        if gk == 7: pre.append(poll_check)
        if gk == 8:
            def hloads(a_):
                a_("s_lshl_b32 s39, s38, 10")
                a_.vmem(f"buffer_load_dwordx4 v[{XR[0]}:{XR[0]+3}], v{V16}, s[{SX}:{SX+3}], s39 offen", "hx")
                a_.vmem(f"buffer_load_dwordx4 v[{XR[1]}:{XR[1]+3}], v{V16}, s[{SX}:{SX+3}], s39 offen offset:1024", "hx")
                a_(f"v_lshlrev_b32 v{t0}, 5, v{LANE}"); a_(f"s_mov_b32 s39, {WS_MOD}")
                a_.vmem(f"buffer_load_dwordx4 v[{MSA}:{MSA+3}], v{t0}, s[{SW}:{SW+3}], s39 offen sc1", "hx")
                a_.vmem(f"buffer_load_dwordx4 v[{MSA+4}:{MSA+7}], v{t0}, s[{SW}:{SW+3}], s39 offen offset:16 sc1", "hx")
                a_.vmem(f"buffer_load_dwordx4 v[{MCA}:{MCA+3}], v{t0}, s[{SW}:{SW+3}], s39 offen offset:2048 sc1", "hx")
                a_.vmem(f"buffer_load_dwordx4 v[{MCA+4}:{MCA+7}], v{t0}, s[{SW}:{SW+3}], s39 offen offset:2064 sc1", "hx")
            pre.append(hloads)
        if gk == 10: pre.append(WVM("hx"))
        stream = []
        if epi and (half == 0 or (gk & 1) == 0): stream = epi.pop(0)
        stD = [e for e in stream if e[0] == 'D']; stV = [e for e in stream if e[0] != 'D']
        if stD: g.put(14, 'D', stD[0][1])
        if gk < 31: g.place_lds(treads2(gk+1))
        g.place_valu(stV, start=1, end=14, per_gap=2)
        assert not stV
        if gk >= 10: g.place_valu(lnq, start=0, end=15, per_gap=2)
        g.put(15, 'W', WLG0())
        g.emit(a, mf, pre)
    epi = [e for grp in epi for e in grp]
    epi = [(("st", e[1]) if e[0] == 'D' else e[1]) for e in epi]
    prof_stamp(a, 4)
    a("s_nop 7")
    print("   K1: LN stream leftover at tail:", len(lnq))
    for e in lnq:
        if len(e) > 2 and e[2]: a("s_nop 1")
        e[1](a)
    a(f"v_lshrrev_b32 v{t0}, 2, v{LANE}"); a(f"v_and_b32 v{t1}, 3, v{LANE}")
    a(f"v_lshlrev_b32 v{t0}, 10, v{t0}"); a(f"v_lshl_add_u32 v{t0}, v{t1}, 8, v{t0}")
    a("s_lshr_b32 s39, s38, 4"); a("s_lshl_b32 s39, s39, 14")
    a("s_and_b32 s48, s38, 15"); a("s_lshl_b32 s48, s48, 4"); a("s_add_u32 s39, s39, s48")
    a(f"s_add_u32 s39, s39, {hex(WS_H)}")
    a.vmem(f"buffer_store_dwordx4 v[{XR[0]}:{XR[0]+3}], v{t0}, s[{SW}:{SW+3}], s39 offen", "hst")
    a.vmem(f"buffer_store_dwordx4 v[{XR[1]}:{XR[1]+3}], v{t0}, s[{SW}:{SW+3}], s39 offen offset:16", "hst")
    vl = [(('st', e[1]) if e[0] == 'D' else e[1]) for grp in v_epi(1) for e in grp]
    for e in epi + vl:
        if isinstance(e, tuple):
            a("s_nop 0"); e[1](a)
        else: e(a)
    if PROFILE:
        prof_stamp(a, 5)
        a("s_waitcnt vmcnt(0)")
        prof_stamp(a, 6); prof_flush(a, 1, SW, 7, vt=20)
    a.label(f"L_{name}_end")
    a("s_endpgm")
    return a.text(), descriptor(name, 512, 256), (name, 256, 256, 163840)
```

```python
import re

WS_MOD   = 0x0
WS_U12   = 0x4000
WS_MODB  = 0x3800
WS_AUX   = 0xC000
WS_STATS = 0x10000
WS_H     = 0x100000
WS_X1    = 0x2800000
WS_Y     = 0x2A00000
WS_ACT   = 0x2000000
WS_WOF   = 0x400000
WS_WDF   = 0x800000
WS_CTX   = 0x1000000
WS_KV    = 0x2000000
WS_SIZE  = 0x4000000

import struct as _st, math as _m
QK_SCALE = _m.log2(_m.e) / _m.sqrt(128.0)
QK_SCALE_HEX = hex(_st.unpack("<I", _st.pack("<f", QK_SCALE))[0])
KA = dict(x=0, ckv=8, wq=16, wuk=24, wuv=32, wo=40, bx=48, wg=56, wu=64, wd=72, c=80, wmod=88, out=96, dbg=104, ws=112)
SZ = dict(x=2048*512*2, ckv=2048*512*2, wq=512*4096*2, wuk=512*4096*2, wuv=512*4096*2, wo=4096*512*2,
          wg=512*1792*2, wu=512*1792*2, wd=1792*512*2, c=512*2, wmod=512*3072*2, out=2048*512*2, dbg=256, ws=WS_SIZE)

def vr(base, n=1, p="v"):
    return f"{p}{base}" if n == 1 else f"{p}[{base}:{base+n-1}]"
def ar(base, n=1): return vr(base, n, "a")
def sr(base, n=1): return vr(base, n, "s")

class Asm:
    def __init__(self):
        self.lines = []
        self.vm = []
        self.vm_all = []
        self.lg = []
        self.uid = 0
    def __call__(self, s):
        for l in s.split("\n"):
            l = l.strip()
            if not l: continue
            self.lines.append(l if l.endswith(":") or l.startswith(".") else "  " + l)
    def label(self, s): self.lines.append(s + ":")
    def comment(self, s): self.lines.append("  ; " + s)
    _gid = [0]
    def newlabel(self, p="L"):
        Asm._gid[0] += 1
        return f"{p}_{Asm._gid[0]}"
    def vmem(self, s, tag=None):
        self(s); self.vm.append(tag); self.vm_all.append(tag)
    def lds(self, s, tag=None):
        self(s); self.lg.append(tag)
    def vm_count_after(self, tag):
        idx = [i for i, t in enumerate(self.vm) if t == tag or (isinstance(t, (tuple, list, set)) and tag in t)]
        if not idx: return None
        return len(self.vm) - 1 - idx[-1]
    def wait_vm_str(self, tag):
        n = self.vm_count_after(tag)
        if n is None: return None
        k = min(n, 63)
        self.vm = self.vm[len(self.vm) - k:] if k else []
        return f"s_waitcnt vmcnt({k})"
    def wait_vm(self, tag):
        s = self.wait_vm_str(tag)
        if s: self(s)
    def wait_lg_str(self, tag):
        idx = [i for i, t in enumerate(self.lg) if t == tag]
        if not idx: return None
        n = len(self.lg) - 1 - idx[-1]
        k = min(n, 15)
        self.lg = self.lg[len(self.lg) - k:] if k else []
        return f"s_waitcnt lgkmcnt({k})"
    def wait_lg(self, tag):
        s = self.wait_lg_str(tag)
        if s: self(s)
    def wait_all(self):
        self("s_waitcnt vmcnt(0) lgkmcnt(0)"); self.vm = []; self.lg = []
    def wait_lg0(self):
        self("s_waitcnt lgkmcnt(0)"); self.lg = []
    def wait_vm0(self):
        self("s_waitcnt vmcnt(0)"); self.vm = []
    def text(self): return "\n".join(self.lines) + "\n"

def srd(a, s, ptr_s, size):
    a(f"s_mov_b32 s{s}, s{ptr_s}")
    a(f"s_and_b32 s{s+1}, s{ptr_s+1}, 0xffff")
    a(f"s_mov_b32 s{s+2}, {hex(size)}")
    a(f"s_mov_b32 s{s+3}, 0x20000")

def kernel_header(a, name):
    a(f".globl {name}")
    a(".p2align 8")
    a(f".type {name},@function")
    a(f"{name}:")

def descriptor(name, vgpr, accum, sgpr=96):
    return f""".p2align 6
.amdhsa_kernel {name}
  .amdhsa_next_free_vgpr {vgpr}
  .amdhsa_next_free_sgpr {sgpr}
  .amdhsa_accum_offset {accum}
  .amdhsa_group_segment_fixed_size 0
  .amdhsa_kernarg_size 120
  .amdhsa_user_sgpr_count 2
  .amdhsa_user_sgpr_kernarg_segment_ptr 1
  .amdhsa_system_sgpr_workgroup_id_x 1
.end_amdhsa_kernel
"""

def round_bf16(a, dst, src, tmp=None):
    a(f"v_cvt_pk_bf16_f32 v{dst}, v{src}, v{src}")
    a(f"v_lshlrev_b32 v{dst}, 16, v{dst}")

def wave_allreduce_add(a, v, t):
    a(f"s_nop 1")
    a(f"v_add_f32_dpp v{v}, v{v}, v{v} quad_perm:[1,0,3,2] row_mask:0xf bank_mask:0xf")
    a(f"s_nop 1")
    a(f"v_add_f32_dpp v{v}, v{v}, v{v} quad_perm:[2,3,0,1] row_mask:0xf bank_mask:0xf")
    a(f"s_nop 1")
    a(f"v_add_f32_dpp v{v}, v{v}, v{v} row_half_mirror row_mask:0xf bank_mask:0xf")
    a(f"s_nop 1")
    a(f"v_add_f32_dpp v{v}, v{v}, v{v} row_mirror row_mask:0xf bank_mask:0xf")
    a(f"v_mov_b32 v{t}, v{v}")
    a(f"s_nop 1")
    a(f"v_permlane16_swap_b32 v{v}, v{t}")
    a(f"s_nop 1")
    a(f"v_add_f32 v{v}, v{v}, v{t}")
    a(f"v_mov_b32 v{t}, v{v}")
    a(f"s_nop 1")
    a(f"v_permlane32_swap_b32 v{v}, v{t}")
    a(f"s_nop 1")
    a(f"v_add_f32 v{v}, v{v}, v{t}")

CODEPF = int(os.environ.get("CODEPF", "1")) if "os" in globals() else 1
def code_prefetch(a, start, end, s0, vtmp, vdst, who="s2", nwg=8):
    import os
    if not int(os.environ.get("CODEPF", "1")): return
    l = a.newlabel("L_cpf"); pc = a.newlabel("L_pc")
    a(f"s_cmp_ge_u32 {who}, {nwg}"); a(f"s_cbranch_scc1 {l}")
    a(f"s_getpc_b64 s[{s0}:{s0+1}]")
    a.label(pc)
    a(f"s_add_u32 s{s0}, s{s0}, {start}-{pc}")
    a(f"s_addc_u32 s{s0+1}, s{s0+1}, 0") if True else None
    a(f"s_and_b32 s{s0+1}, s{s0+1}, 0xffff")
    a(f"s_mov_b32 s{s0+2}, {end}-{start}")
    a(f"s_mov_b32 s{s0+3}, 0x20000")
    a(f"v_lshlrev_b32 v{vtmp}, 7, v0")
    a(f"buffer_load_dword v{vdst}, v{vtmp}, s[{s0}:{s0+3}], 0 offen")
    a.label(l)

def mfma16(d, a_, b, c=None):
    return f"v_mfma_f32_16x16x32_bf16 {d}, {a_}, {b}, {d if c is None else c}"

class Gaps:
    def __init__(self, n):
        self.n = n
        self.g = [[] for _ in range(n)]
    def put(self, i, item, front=False):
        if front: self.g[i].insert(0, item)
        else: self.g[i].append(item)
    def free(self, start=0, maxlen=0):
        for i in range(start, self.n):
            if len(self.g[i]) <= maxlen: return i
        return None
    def emit(self, a, mfmas, pre=()):
        assert len(mfmas) == self.n
        for p in pre: p(a)
        for m, items in zip(mfmas, self.g):
            a(m)
            for it in items: it(a)

def S(s):
    return lambda a: a(s)
def VM(s, tag=None):
    return lambda a: a.vmem(s, tag)
def LG(s, tag=None):
    return lambda a: a.lds(s, tag)
def WVM(tag):
    return lambda a: a.wait_vm(tag)
def WLG0():
    return lambda a: a.wait_lg0()

import os
PROFILE = int(os.environ.get("PROFILE", "0"))
WS_PROF = 0x80000
PROF_V = [31]
def prof_init(a, v):
    PROF_V[0] = v
    if PROFILE: a(f"v_mov_b32 v{v}, 0")
def prof_stamp(a, slot):
    if not PROFILE: return
    a("s_memrealtime s[92:93]")
    a("s_memtime s[94:95]")
    a("s_waitcnt lgkmcnt(0)")
    a(f"v_writelane_b32 v{PROF_V[0]}, s92, {slot}")
    a(f"v_writelane_b32 v{PROF_V[0]}, s94, {16+slot}")
def prof_flush(a, kidx, ws_srd, nslots, vt=250, wg="s2"):
    if not PROFILE: return
    l = a.newlabel("prof")
    a(f"v_cmp_gt_u32 vcc, 32, v0")
    a("s_and_saveexec_b64 s[92:93], vcc")
    a(f"s_cbranch_execz {l}")
    a(f"s_lshl_b32 s94, {wg}, 7")
    a(f"s_add_u32 s94, s94, {WS_PROF + kidx*65536}")
    a(f"v_lshlrev_b32 v{vt}, 2, v0")
    a(f"buffer_store_dword v{PROF_V[0]}, v{vt}, s[{ws_srd}:{ws_srd+3}], s94 offen")
    a.label(l)
    a("s_mov_b64 exec, s[92:93]")

class Sched:
    def __init__(self, n):
        self.n = n
        self.g = [[] for _ in range(n)]
    def kinds(self, i): return "".join(k for k, _ in self.g[i])
    def put(self, i, kind, item): self.g[i].append((kind, item))
    def can_v(self, i):
        k = self.kinds(i)
        if 'D' in k or 'E' in k: return False
        return len(k) < 2
    def can_l(self, i): return len(self.g[i]) == 0
    def place_vmem(self, fifo, positions):
        for p in positions:
            if not fifo: break
            pre = []
            while fifo and fifo[0][0] != 'D': pre.append(fifo.pop(0))
            if not fifo:
                for k, it in pre: self.put(p, k, it)
                break
            assert len(self.g[p]) == 0, (p, self.kinds(p))
            q = max(p - 1, 0)
            for k, it in pre:
                if p == 0: self.put(0, k, it)
                else: self.put(q, k, it)
            if p == 0 and pre: self.put(0, 'S', S("s_nop 0"))
            self.put(p, 'D', fifo.pop(0)[1])
    def place_lds(self, items, start=0, skip=()):
        i = start
        for it in items:
            while i < self.n and (not self.can_l(i) or i in skip): i += 1
            assert i < self.n, "no room for lds reads"
            self.put(i, 'L', it); i += 1
        return i
    def place_valu(self, stream, start=0, end=None, per_gap=2):
        end = self.n if end is None else end
        last = -10
        for i in range(start, end):
            cnt = 0
            while stream and cnt < per_gap:
                e = stream[0]; k = e[0]; mind = e[2] if len(e) > 2 else 0
                if i - last < mind: break
                if k in ('E', 'D'):
                    if len(self.g[i]) == 0: self.put(i, k, e[1]); stream.pop(0); last = i
                    break
                if not self.can_v(i): break
                self.put(i, k, e[1]); stream.pop(0); last = i; cnt += 1
    def emit(self, a, mfmas, pre=()):
        assert len(mfmas) == self.n
        for p in pre: p(a)
        for m, items in zip(mfmas, self.g):
            a(m)
            for k, it in items: it(a)


def prefetch_lines(a, key, srd_s, ptr_s, voff, vdst, soff_s, nwg, wg="s2", tag="pf"):
    size = SZ[key]
    share = (size // nwg + 127) // 128 * 128
    n = (share + 8191) // 8192
    srd(a, srd_s, ptr_s, size)
    a(f"s_mul_i32 s{soff_s}, {wg}, {share}")
    for i in range(n):
        a.vmem(f"buffer_load_dword v{vdst}, v{voff}, s[{srd_s}:{srd_s+3}], s{soff_s} offen", tag)
        if i + 1 < n: a(f"s_add_u32 s{soff_s}, s{soff_s}, 8192")

class EDF:
    def __init__(self): self.q = []
    def add(self, group, need, avail=-1, after=None): self.q.append(dict(g=list(group), need=need, avail=avail, started=False))
    def take(self, step, n):
        out = []; cnt = 0
        while cnt < n:
            cand = [x for x in self.q if x['avail'] <= step]
            if not cand: break
            st = [x for x in cand if x['started']]
            x = st[0] if st else min(cand, key=lambda y: y['need'])
            x['started'] = True
            while x['g'] and cnt < n:
                k, it = x['g'].pop(0); out.append((k, it))
                if k == 'D': cnt += 1
            while x['g'] and x['g'][0][0] != 'D' and not any(k == 'D' for k, _ in x['g']):
                out.append(x['g'].pop(0))
            if not x['g']: self.q.remove(x)
        return out
    def empty(self): return not self.q
```

```python
from core import *

import os
MAP84 = int(os.environ.get('MAP84', '1'))
LD_C = os.environ.get('LD_C', '')
LD_W = os.environ.get('LD_W', '')
WARM = int(os.environ.get('WARM', '0'))
STORE_KV = os.environ.get("STORE_KV", "sc1")

def gen_ln_rows(a, XR, nrows, modsa, modca, tmp):
    X = tmp
    S1 = tmp + 8; T = tmp + 9; M = tmp + 10; V = tmp + 11; D = tmp + 12; U = tmp+13
    for j in range(8):
        a(f"v_add_f32 v{modca+j}, 1.0, v{modca+j}")
        round_bf16(a, modca+j, modca+j)
    for xr in XR:
        for d in range(4):
            a(f"v_lshlrev_b32 v{X+2*d}, 16, v{xr+d}")
            a(f"v_and_b32 v{X+2*d+1}, 0xffff0000, v{xr+d}")
        a(f"v_add_f32 v{S1}, v{X}, v{X+1}")
        for j in range(2, 8): a(f"v_add_f32 v{S1}, v{S1}, v{X+j}")
        wave_allreduce_add(a, S1, T)
        a(f"v_mul_f32 v{S1}, 0x3b000000, v{S1}")
        a(f"v_sub_f32 v{D}, v{X}, v{S1}")
        a(f"v_mul_f32 v{V}, v{D}, v{D}")
        for j in range(1, 8):
            a(f"v_sub_f32 v{D}, v{X+j}, v{S1}")
            a(f"v_fmac_f32 v{V}, v{D}, v{D}")
        wave_allreduce_add(a, V, T)
        a(f"v_mul_f32 v{V}, 0x3b000000, v{V}")
        round_bf16(a, V, V)
        round_bf16(a, M, S1)
        a(f"v_add_f32 v{V}, 0x3727c5ac, v{V}")
        round_bf16(a, V, V)
        a(f"v_sqrt_f32 v{V}, v{V}")
        a("s_nop 0")
        round_bf16(a, V, V)
        a(f"v_rcp_f32 v{U}, v{V}")
        a("s_nop 0")
        for j in range(8):
            a(f"v_sub_f32 v{D}, v{X+j}, v{M}")
            round_bf16(a, D, D)
            a(f"v_mul_f32 v{T}, v{D}, v{U}")
            a(f"v_fma_f32 v{S1}, -v{T}, v{V}, v{D}")
            a(f"v_fmac_f32 v{T}, v{S1}, v{U}")
            round_bf16(a, T, T)
            a(f"v_mul_f32 v{T}, v{T}, v{modca+j}")
            round_bf16(a, T, T)
            a(f"v_add_f32 v{X+j}, v{T}, v{modsa+j}")
        for d in range(4):
            a(f"v_cvt_pk_bf16_f32 v{xr+d}, v{X+2*d}, v{X+2*d+1}")

def ln_stream(XR, PSA, PA1, SA, CA, base):
    q = []
    def V(s_, m=0): q.append(('V', S(s_), m))
    def E(s_, m=0): q.append(('E', S(s_), m))
    X = [base, base + 8]; T = base + 16
    S1 = [T, T+1]; S2 = [T+2, T+3]; TT = [T+4, T+5]; M = [T+6, T+7]; R = [T+8, T+9]; P = T + 10
    def rnd8(b):
        for d in range(4): V(f"v_cvt_pk_bf16_f32 v{P+d}, v{b+2*d}, v{b+2*d+1}")
        for d in range(4):
            V(f"v_lshlrev_b32 v{b+2*d}, 16, v{P+d}"); V(f"v_and_b32 v{b+2*d+1}, 0xffff0000, v{P+d}")
    for d in range(4):
        V(f"v_lshlrev_b32 v{CA+2*d}, 16, v{PA1+d}"); V(f"v_and_b32 v{CA+2*d+1}, 0xffff0000, v{PA1+d}")
        V(f"v_lshlrev_b32 v{SA+2*d}, 16, v{PSA+d}"); V(f"v_and_b32 v{SA+2*d+1}, 0xffff0000, v{PSA+d}")
    for r in range(2):
        for d in range(4):
            V(f"v_lshlrev_b32 v{X[r]+2*d}, 16, v{XR[r]+d}"); V(f"v_and_b32 v{X[r]+2*d+1}, 0xffff0000, v{XR[r]+d}")
    for r in range(2):
        V(f"v_add_f32 v{S1[r]}, v{X[r]}, v{X[r]+1}"); V(f"v_mul_f32 v{S2[r]}, v{X[r]}, v{X[r]}"); V(f"v_fmac_f32 v{S2[r]}, v{X[r]+1}, v{X[r]+1}")
    for j in range(2, 8):
        for r in range(2):
            V(f"v_add_f32 v{S1[r]}, v{S1[r]}, v{X[r]+j}"); V(f"v_fmac_f32 v{S2[r]}, v{X[r]+j}, v{X[r]+j}")
    regs = [S1[0], S2[0], S1[1], S2[1]]
    for dpp in ("quad_perm:[1,0,3,2]", "quad_perm:[2,3,0,1]", "row_half_mirror", "row_mirror"):
        for i, v in enumerate(regs): V(f"v_add_f32_dpp v{v}, v{v}, v{v} {dpp} row_mask:0xf bank_mask:0xf", 2 if i == 0 else 0)
    tmp = [P, P+1, P+2, P+3]
    for sw in ("v_permlane16_swap_b32", "v_permlane32_swap_b32"):
        for i, v in enumerate(regs): V(f"v_mov_b32 v{tmp[i]}, v{v}", 1 if i == 0 else 0)
        for i, v in enumerate(regs): V(f"{sw} v{v}, v{tmp[i]}", 2 if i == 0 else 0)
        for i, v in enumerate(regs): V(f"v_add_f32 v{v}, v{v}, v{tmp[i]}", 2 if i == 0 else 0)
    for r in range(2):
        V(f"v_mul_f32 v{S1[r]}, 0x3b000000, v{S1[r]}"); V(f"v_mul_f32 v{S2[r]}, 0x3b000000, v{S2[r]}")
    for r in range(2): V(f"v_fma_f32 v{S2[r]}, -v{S1[r]}, v{S1[r]}, v{S2[r]}")
    for r in range(2): V(f"v_max_f32 v{S2[r]}, 0, v{S2[r]}")
    V(f"v_cvt_pk_bf16_f32 v{P}, v{S1[0]}, v{S1[1]}"); V(f"v_cvt_pk_bf16_f32 v{P+1}, v{S2[0]}, v{S2[1]}")
    V(f"v_lshlrev_b32 v{M[0]}, 16, v{P}"); V(f"v_and_b32 v{M[1]}, 0xffff0000, v{P}")
    V(f"v_lshlrev_b32 v{S2[0]}, 16, v{P+1}"); V(f"v_and_b32 v{S2[1]}, 0xffff0000, v{P+1}")
    for r in range(2): V(f"v_add_f32 v{S2[r]}, 0x3727c5ac, v{S2[r]}")
    V(f"v_cvt_pk_bf16_f32 v{P}, v{S2[0]}, v{S2[1]}")
    V(f"v_lshlrev_b32 v{S2[0]}, 16, v{P}"); V(f"v_and_b32 v{S2[1]}, 0xffff0000, v{P}")
    for r in range(2): E(f"v_sqrt_f32 v{S2[r]}, v{S2[r]}", 1)
    V(f"v_cvt_pk_bf16_f32 v{P}, v{S2[0]}, v{S2[1]}", 1)
    V(f"v_lshlrev_b32 v{S2[0]}, 16, v{P}"); V(f"v_and_b32 v{S2[1]}, 0xffff0000, v{P}")
    for r in range(2): E(f"v_rcp_f32 v{R[r]}, v{S2[r]}", 1)
    for r in range(2):
        for j in range(8): V(f"v_sub_f32 v{X[r]+j}, v{X[r]+j}, v{M[r]}", 1 if (r == 0 and j == 0) else 0)
        rnd8(X[r])
        for j in range(8): V(f"v_mul_f32 v{X[r]+j}, v{X[r]+j}, v{R[r]}")
        rnd8(X[r])
        for j in range(8): V(f"v_mul_f32 v{X[r]+j}, v{X[r]+j}, v{CA+j}")
        rnd8(X[r])
        for j in range(8): V(f"v_add_f32 v{X[r]+j}, v{X[r]+j}, v{SA+j}")
        for d in range(4): V(f"v_cvt_pk_bf16_f32 v{XR[r]+d}, v{X[r]+2*d}, v{X[r]+2*d+1}")
    return q

def gen_k1(name="kv_kernel"):
    a = Asm()
    kernel_header(a, name)
    a("s_cmp_ge_u32 s2, 256")
    a(f"s_cbranch_scc1 L_{name}_end")
    prof_init(a, 31)
    prof_stamp(a, 0)
    a(f"s_load_dwordx2 s[4:5], s[0:1], {KA['x']}")
    a(f"s_load_dwordx2 s[6:7], s[0:1], {KA['ckv']}")
    a(f"s_load_dwordx4 s[8:11], s[0:1], {KA['wuk']}")
    a(f"s_load_dwordx2 s[12:13], s[0:1], {KA['ws']}")
    a(f"s_load_dwordx4 s[52:55], s[0:1], {KA['c']}")
    a(f"s_load_dwordx2 s[56:57], s[0:1], {KA['dbg']}")
    a(f"s_load_dwordx2 s[58:59], s[0:1], {KA['wq']}")
    a("v_lshrrev_b32 v1, 6, v0")
    a("v_and_b32 v2, 63, v0")
    a("s_nop 0")
    a("v_readfirstlane_b32 s3, v1")
    a("s_waitcnt lgkmcnt(0)")
    prof_stamp(a, 7)
    code_prefetch(a, f"L_{name}_pf0", f"L_{name}_codeend", 84, 4, 29)
    a.label(f"L_{name}_pf0")
    SX, SC, SK, SV, SW = 16, 20, 24, 28, 32
    srd(a, SX, 4, SZ['x']); srd(a, SC, 6, SZ['ckv']); srd(a, SK, 8, SZ['wuk']); srd(a, SV, 10, SZ['wuv']); srd(a, SW, 12, SZ['ws'])
    if MAP84:
        a("s_and_b32 s39, s2, 7"); a("s_lshr_b32 s50, s2, 3")
        a("s_lshr_b32 s36, s39, 1"); a("s_lshl_b32 s36, s36, 3"); a("s_and_b32 s37, s50, 7"); a("s_add_u32 s36, s36, s37")
        a("s_and_b32 s37, s39, 1"); a("s_lshl_b32 s37, s37, 2"); a("s_lshr_b32 s50, s50, 3"); a("s_add_u32 s37, s37, s50")
    else:
        a("s_and_b32 s36, s2, 7"); a("s_lshl_b32 s36, s36, 2"); a("s_lshr_b32 s37, s2, 3"); a("s_and_b32 s37, s37, 3"); a("s_add_u32 s36, s36, s37")
        a("s_lshr_b32 s37, s2, 5")
    LANE = 2
    V16 = 3
    DC = 96
    DW1 = 104
    TA = 108
    CR = 116
    DW2 = 4
    TB = 8
    t0, t1, t2, t3, t4 = 12, 13, 14, 15, 16
    a(f"v_lshlrev_b32 v{V16}, 4, v{LANE}")
    SCC_, SMD, SDB, SPF = 60, 64, 68, 72
    srd(a, SCC_, 52, SZ['c']); srd(a, SMD, 54, SZ['wmod']); srd(a, SDB, 56, SZ['dbg'])
    AMW, AMC = 224, 240
    MW, MC, MA_, MT = 20, 24, 12, 26
    sCG = 76
    a(f"s_and_b32 s{sCG}, s2, 7"); a("s_lshr_b32 s39, s2, 3"); a("s_lshr_b32 s50, s39, 2"); a("s_lshl_b32 s50, s50, 3")
    a(f"s_add_u32 s{sCG}, s{sCG}, s50"); a(f"s_lshl_b32 s{sCG}, s{sCG}, 2"); a("s_and_b32 s39, s39, 3"); a(f"s_add_u32 s{sCG}, s{sCG}, s39")
    def mod_loads(a):
        lm1 = a.newlabel("L_m1")
        a("s_cmp_ge_u32 s2, 192"); a(f"s_cbranch_scc1 {lm1}")
        a(f"v_lshrrev_b32 v{t0}, 1, v0")
        a(f"v_lshlrev_b32 v{t1}, 1, v{t0}")
        for i in range(4): a(f"buffer_load_ushort a{AMC+i}, v{t1}, s[{SCC_}:{SCC_+3}], 0 offen offset:{256*i}")
        a(f"v_mul_u32_u24 v{t1}, 6144, v{t0}"); a(f"v_and_b32 v{t2}, 1, v0"); a(f"v_lshl_add_u32 v{t1}, v{t2}, 4, v{t1}")
        a(f"s_lshl_b32 s39, s{sCG}, 5")
        for i in range(4):
            a(f"buffer_load_dwordx4 a[{AMW+4*i}:{AMW+4*i+3}], v{t1}, s[{SMD}:{SMD+3}], s39 offen")
            if i < 3: a(f"s_add_u32 s39, s39, {128*6144}")
        a.label(lm1)
    a("s_lshl_b32 s39, s2, 14"); a("s_lshl_b32 s50, s3, 12"); a("s_add_u32 s39, s39, s50")
    a(f"s_add_u32 s{SPF}, s58, s39"); a(f"s_addc_u32 s{SPF+1}, s59, 0"); a(f"s_and_b32 s{SPF+1}, s{SPF+1}, 0xffff")
    a(f"s_mov_b32 s{SPF+2}, 4096"); a(f"s_mov_b32 s{SPF+3}, 0x20000")
    XR = [20, 24]; PSA = 12; PA1 = 16; MSA = 192; MCA = 200
    a("s_lshl_b32 s38, s2, 3"); a("s_lshl_b32 s39, s3, 1"); a("s_add_u32 s38, s38, s39")
    a(f"v_lshrrev_b32 v{t0}, 3, v{LANE}")
    a(f"v_and_b32 v{t1}, 7, v{LANE}")
    a(f"v_lshrrev_b32 v{t2}, 1, v{t0}")
    a(f"v_xor_b32 v{t1}, v{t1}, v{t2}")
    a(f"v_lshlrev_b32 v{t1}, 4, v{t1}")
    a(f"v_lshl_add_u32 v{t1}, v{t0}, 10, v{t1}")
    a(f"v_xor_b32 v{t2}, 64, v{t1}")
    for p in range(8):
        a(f"v_add_u32 v{DC+p}, {p*8192 - (p & 3)*1024}, v{t2 if p & 1 else t1}")
    a(f"v_lshrrev_b32 v{t0}, 4, v{LANE}")
    a(f"v_and_b32 v{t1}, 15, v{LANE}")
    a(f"v_lshrrev_b32 v{t2}, 1, v{t1}")
    a(f"v_xor_b32 v{t2}, v{t2}, v{t0}")
    a(f"v_lshlrev_b32 v{t2}, 5, v{t2}")
    a(f"v_and_b32 v{t3}, 1, v{t1}")
    a(f"v_lshl_add_u32 v{t2}, v{t3}, 4, v{t2}")
    a(f"v_lshl_add_u32 v{t2}, v{t0}, 13, v{t2}")
    a(f"v_xor_b32 v{t3}, 128, v{t2}")
    for j in range(4):
        a(f"v_add_u32 v{DW1+j}, {j*4*8192 - j*1024}, v{t3 if j >= 2 else t2}")
    a("s_mul_i32 s40, s3, 24576"); a("s_add_u32 s40, s40, 65536")
    def SETUP2(a):
        a(f"v_lshrrev_b32 v{t0}, 4, v{LANE}")
        a(f"v_bfe_u32 v{t1}, v{LANE}, 2, 2")
        a(f"v_and_b32 v{t2}, 3, v{LANE}")
        a(f"v_lshl_add_u32 v{t3}, v{t0}, 3, v{t1}")
        a(f"v_and_b32 v{t4}, 1, v{t0}")
        a(f"v_lshl_add_u32 v{t4}, v{t4}, 2, v{t1}")
        a(f"v_lshlrev_b32 v{t4}, 5, v{t4}")
        a(f"v_lshlrev_b32 v17, 8, v{t3}")
        a(f"v_lshl_add_u32 v17, v{t2}, 3, v17")
        for nb in range(8):
            a(f"v_xor_b32 v18, {nb*32}, v{t4}")
            a(f"v_add_u32 v{TA+nb}, v17, v18")
        a(f"v_lshrrev_b32 v{t4}, 1, v{t1}")
        a(f"v_and_b32 v18, 1, v{t0}")
        a(f"v_lshl_add_u32 v{t4}, v18, 1, v{t4}")
        a(f"v_lshlrev_b32 v{t4}, 5, v{t4}")
        a(f"v_lshlrev_b32 v17, 7, v{t3}")
        a(f"v_lshl_add_u32 v17, v{t2}, 3, v17")
        for nb in range(4):
            a(f"v_xor_b32 v18, {nb*32}, v{t4}")
            a(f"v_add_u32 v{TB+nb}, v17, v18")
        a(f"v_lshrrev_b32 v{t0}, 3, v{LANE}")
        a(f"v_and_b32 v{t1}, 7, v{LANE}")
        a(f"v_lshrrev_b32 v{t2}, 1, v{t1}")
        a(f"v_bfe_u32 v{t3}, v{t0}, 1, 1")
        a(f"v_xor_b32 v{t2}, v{t2}, v{t3}")
        a(f"v_lshlrev_b32 v{t2}, 5, v{t2}")
        a(f"v_and_b32 v{t3}, 1, v{t1}")
        a(f"v_lshl_add_u32 v{t2}, v{t3}, 4, v{t2}")
        a(f"v_lshl_add_u32 v{t2}, v{t0}, 13, v{t2}")
        a(f"v_xor_b32 v{t3}, 64, v{t2}")
        for j in range(4):
            a(f"v_add_u32 v{DW2+j}, {j*8*8192 - j*1024}, v{t3 if j & 1 else t2}")
        a(f"v_and_b32 v{t0}, 15, v{LANE}")
        a(f"v_lshrrev_b32 v{t1}, 4, v{LANE}")
        a(f"v_lshrrev_b32 v{t2}, 1, v{t0}")
        a(f"v_xor_b32 v{t1}, v{t1}, v{t2}")
        a(f"v_lshlrev_b32 v{t1}, 4, v{t1}")
        a(f"v_lshl_add_u32 v{t1}, v{t0}, 7, v{t1}")
        a(f"v_add_u32 v{CR}, s40, v{t1}")
        a(f"v_xor_b32 v{CR+1}, 64, v{CR}")
    a("s_lshl_b32 s41, s37, 18"); a("s_lshl_b32 s39, s3, 16"); a("s_add_u32 s41, s41, s39")
    a("s_lshl_b32 s42, s3, 17"); a("s_lshl_b32 s39, s36, 8"); a("s_add_u32 s42, s42, s39")
    a("s_lshl_b32 s43, s3, 18"); a("s_add_u32 s43, s43, s39")
    a("s_lshl_b32 s44, s3, 12")
    a("s_lshl_b32 s45, s36, 5"); a("s_lshl_b32 s39, s37, 2"); a("s_add_u32 s45, s45, s39"); a("s_add_u32 s45, s45, s3")
    a("s_lshl_b32 s45, s45, 15"); a(f"s_add_u32 s45, s45, {hex(WS_KV)}")

    a(f"s_mov_b32 s49, {QK_SCALE_HEX}")
    def dma_c(cc):
        it = []
        for half in range(2):
            grp = []
            grp.append(S(f"s_add_u32 m0, s40, {(cc % 3)*8192 + half*4096}"))
            for q in range(4):
                p = half*4 + q
                grp.append(VM(f"buffer_load_dwordx4 v{DC+p}, s[{SC}:{SC+3}], s46 offen offset:{q*1024} {LD_C} lds", ("c", cc)))
            it.append(grp)
        return S(f"s_add_u32 s46, s41, {cc*128}"), it
    def dma_w(st):
        slot = st & 3
        if st < 8:
            pre = S(f"s_add_u32 s47, s42, {st*64*8192}"); srdn = SK; V = DW1
        else:
            half = (st - 8) // 4; k = (st - 8) % 4
            pre = S(f"s_add_u32 s47, s43, {k*128*8192 + half*128}"); srdn = SV; V = DW2
        grp = [S(f"s_add_u32 m0, s44, {slot*16384 if st < 12 else 65536 + (st - 12)*16384}")]
        for j in range(4):
            grp.append(VM(f"buffer_load_dwordx4 v{V+j}, s[{srdn}:{srdn+3}], s47 offen offset:{j*1024} {LD_W} lds", ("w", st)))
        return pre, grp
    def run(items):
        for it in items: it(a)
    def rung(grp):
        grp[0](a); a("s_nop 0"); run(grp[1:])
    VT = 118
    a(f"v_lshlrev_b32 v{VT}, 10, v{LANE}")
    a("s_lshr_b32 s39, s2, 3"); a("s_and_b32 s39, s39, 3"); a("s_lshl_b32 s39, s39, 16")
    a("s_lshl_b32 s50, s37, 18"); a("s_add_u32 s39, s39, s50"); a("s_lshl_b32 s50, s3, 8"); a("s_add_u32 s39, s39, s50")
    pre, grps = dma_c(0); run([pre]); [rung(g) for g in grps]
    pre, grp = dma_w(0); run([pre]); rung(grp)
    if WARM:
        a(f"buffer_load_dword v{VT+1}, v{VT}, s[{SC}:{SC+3}], s39 offen")
        a(f"buffer_load_dword v{VT+1}, v{VT}, s[{SC}:{SC+3}], s39 offen offset:128")
        a(f"v_lshlrev_b32 v{VT}, 13, v{LANE}")
        a("s_lshl_b32 s39, s37, 19"); a("s_lshl_b32 s50, s36, 8"); a("s_add_u32 s39, s39, s50")
        a("s_and_b32 s50, s3, 1"); a("s_lshl_b32 s50, s50, 7"); a("s_add_u32 s39, s39, s50")
        lwv = a.newlabel("L_wv"); lwd = a.newlabel("L_wd")
        a("s_cmp_ge_u32 s3, 2"); a(f"s_cbranch_scc1 {lwv}")
        a(f"buffer_load_dword v{VT+1}, v{VT}, s[{SK}:{SK+3}], s39 offen"); a(f"s_branch {lwd}")
        a.label(lwv); a(f"buffer_load_dword v{VT+1}, v{VT}, s[{SV}:{SV+3}], s39 offen")
        a.label(lwd)
    SETUP2(a)
    prof_stamp(a, 8)
    pre, grps = dma_c(1); run([pre]); [rung(g) for g in grps]
    pre, grp = dma_w(1); run([pre]); rung(grp)
    prof_stamp(a, 9)
    pre, grps = dma_c(2); run([pre]); [rung(g) for g in grps]
    pre, grp = dma_w(2); run([pre]); rung(grp)
    mod_loads(a)
    _mark = len(a.vm_all)
    a.vm_after_mod = lambda: min(63, len(a.vm_all) - _mark)
    def mod_job(a):
        MS = 20; MX = 118; t0, t1, t2, t3 = 24, 25, 118, 119; MW = 20
        a('s_waitcnt vmcnt(%d)' % a.vm_after_mod())
        lm2 = a.newlabel("L_m2")
        a("s_cmp_ge_u32 s2, 192"); a(f"s_cbranch_scc1 {lm2}")
        for i in range(4):
            r = MC + 0 + (i & 1) if False else 8 + 0
            r = MS + i
            a(f"v_accvgpr_read_b32 v{r}, a{AMC+i}")
            a(f"v_lshlrev_b32 v{r}, 16, v{r}")
            a(f"v_mul_f32 v{MT}, 0xbfb8aa3b, v{r}"); a(f"v_exp_f32 v{MT}, v{MT}"); a("s_nop 0")
            a(f"v_add_f32 v{MT}, 1.0, v{MT}"); a(f"v_rcp_f32 v{MT}, v{MT}"); a("s_nop 0")
            a(f"v_mul_f32 v{r}, v{r}, v{MT}")
            round_bf16(a, r, r)
        for i in range(4):
            for d in range(4):
                a(f"v_accvgpr_read_b32 v{MT+1}, a{AMW+4*i+d}")
                a(f"v_lshlrev_b32 v{MT}, 16, v{MT+1}"); a(f"v_and_b32 v{MT+1}, 0xffff0000, v{MT+1}")
                if i == 0:
                    a(f"v_mul_f32 v{MA_+2*d}, v{MS}, v{MT}"); a(f"v_mul_f32 v{MA_+2*d+1}, v{MS}, v{MT+1}")
                else:
                    a(f"v_fmac_f32 v{MA_+2*d}, v{MS+i}, v{MT}"); a(f"v_fmac_f32 v{MA_+2*d+1}, v{MS+i}, v{MT+1}")
        for dpp in ("quad_perm:[2,3,0,1]", "row_ror:4", "row_ror:8"):
            for j in range(8): a(f"v_add_f32_dpp v{MA_+j}, v{MA_+j}, v{MA_+j} {dpp} row_mask:0xf bank_mask:0xf")
        for sw in ("v_permlane16_swap_b32", "v_permlane32_swap_b32"):
            for j in range(8): a(f"v_mov_b32 v{MX+j}, v{MA_+j}")
            a("s_nop 0")
            for j in range(8): a(f"{sw} v{MA_+j}, v{MX+j}")
            a("s_nop 0")
            for j in range(8): a(f"v_add_f32 v{MA_+j}, v{MA_+j}, v{MX+j}")
        SCR = 3*16384
        a(f"v_and_b32 v{t0}, 1, v{LANE}"); a(f"v_lshlrev_b32 v{t0}, 5, v{t0}"); a("s_lshl_b32 s39, s3, 6"); a(f"s_add_u32 s39, s39, {SCR}")
        a(f"v_add_u32 v{t0}, s39, v{t0}")
        lw = a.newlabel("L_mw")
        a(f"v_cmp_gt_u32 vcc, 2, v{LANE}"); a("s_and_saveexec_b64 s[50:51], vcc"); a(f"s_cbranch_execz {lw}")
        a(f"ds_write_b128 v{t0}, v[{MA_}:{MA_+3}]"); a(f"ds_write_b128 v{t0}, v[{MA_+4}:{MA_+7}] offset:16")
        a.label(lw); a("s_mov_b64 exec, s[50:51]")
        a("s_waitcnt lgkmcnt(0)"); a("s_barrier")
        lf = a.newlabel("L_mf")
        a("s_cmp_lg_u32 s3, 0"); a(f"s_cbranch_scc1 {lf}")
        a(f"v_lshlrev_b32 v{t0}, 2, v{LANE}"); a(f"v_add_u32 v{t1}, {SCR}, v{t0}")
        for w in range(4): a(f"ds_read_b32 v{MW+w}, v{t1} offset:{64*w}")
        a("s_waitcnt lgkmcnt(0)")
        a(f"v_add_f32 v{MW}, v{MW}, v{MW+1}"); a(f"v_add_f32 v{MW+2}, v{MW+2}, v{MW+3}"); a(f"v_add_f32 v{MW}, v{MW}, v{MW+2}")
        round_bf16(a, MW, MW)
        a(f"v_cmp_gt_u32 vcc, 16, v{LANE}"); a("s_and_saveexec_b64 s[50:51], vcc")
        lx = a.newlabel("L_mx")
        a(f"s_cbranch_execz {lx}")
        a(f"s_lshl_b32 s39, s{sCG}, 6"); a(f"s_add_u32 s39, s39, {WS_MOD}")
        a(f"buffer_store_dword v{MW}, v{t0}, s[{SW}:{SW+3}], s39 offen sc1")
        lpk = a.newlabel("L_mpk")
        a(f"s_cmp_lt_u32 s{sCG}, 64"); a(f"s_cbranch_scc0 {lpk}")
        a(f"v_add_f32 v{MW+1}, 1.0, v{MW}"); a(f"v_cvt_pk_bf16_f32 v{MW+1}, v{MW+1}, v{MW+1}")
        a(f"v_lshrrev_b32 v{MW+2}, 16, v{MW}")
        a(f"s_cmp_ge_u32 s{sCG}, 32"); a("s_cselect_b64 vcc, -1, 0")
        a(f"v_cndmask_b32 v{MW+1}, v{MW+2}, v{MW+1}, vcc")
        a(f"v_lshlrev_b32 v{t1}, 1, v{LANE}"); a(f"s_lshl_b32 s39, s{sCG}, 5"); a(f"s_add_u32 s39, s39, {WS_MODB}")
        a(f"buffer_store_short v{MW+1}, v{t1}, s[{SW}:{SW+3}], s39 offen sc1")
        a.label(lpk)
        a(f"s_sub_u32 s39, s{sCG}, 96"); a("s_cmp_lt_u32 s39, 64"); a(f"s_cbranch_scc0 {lx}")
        a("s_lshr_b32 s48, s39, 5")
        a(f"v_add_f32 v{MW+1}, 1.0, v{MW}"); a(f"v_cvt_pk_bf16_f32 v{MW+1}, v{MW+1}, v{MW+1}")
        a(f"v_lshrrev_b32 v{MW+2}, 16, v{MW}")
        a("s_cmp_eq_u32 s48, 1"); a("s_cselect_b64 s[62:63], -1, 0") if False else None
        a("s_cmp_eq_u32 s48, 1"); a("s_cselect_b64 vcc, -1, 0")
        a(f"v_cndmask_b32 v{MW+1}, v{MW+2}, v{MW+1}, vcc")
        a("s_and_b32 s39, s39, 31"); a("s_lshl_b32 s39, s39, 4"); a(f"v_add_u32 v{t1}, s39, v{LANE}")
        a(f"v_lshrrev_b32 v{t2}, 5, v{t1}"); a(f"v_lshlrev_b32 v{t2}, 10, v{t2}")
        a(f"v_bfe_u32 v{t3}, v{t1}, 3, 2"); a(f"v_lshl_add_u32 v{t2}, v{t3}, 8, v{t2}")
        a(f"v_and_b32 v{t3}, 7, v{t1}"); a(f"v_lshl_add_u32 v{t2}, v{t3}, 1, v{t2}")
        a("s_xor_b32 s48, s48, 1"); a("s_lshl_b32 s48, s48, 4"); a(f"s_add_u32 s48, s48, {WS_AUX}")
        a(f"buffer_store_short v{MW+1}, v{t2}, s[{SW}:{SW+3}], s48 offen")
        a.label(lx); a("s_mov_b64 exec, s[50:51]")
        a.label(lf)
        a.label(lm2)
    VZ, VL0, VPO, VPF = 1, 28, 29, 30
    a(f"v_mov_b32 v{VZ}, 0")
    a(f"v_cmp_eq_u32 vcc, 0, v{LANE}"); a(f"v_mov_b32 v{VL0}, 0x1000"); a("s_nop 0"); a(f"v_cndmask_b32 v{VL0}, v{VL0}, v{VZ}, vcc")
    a(f"v_and_b32 v{VPF}, 7, v{LANE}"); a(f"v_lshlrev_b32 v{VPF}, 7, v{VPF}")

    def ckv(kb, ks): return ar((ks*4 + kb)*4, 4)
    WB1 = [32, 64]
    def KA_(db, kb): return 128 + ((db >> 1)*4 + kb)*8 + (db & 1)*4
    WB2 = [32, 48]
    def VA_(base, kb, db): return base + ((kb >> 1)*4 + db)*8 + (kb & 1)*4
    VB = [64, 128]

    def treads1(ks):
        st, u = ks // 2, ks & 1
        it = []
        for db in range(8):
            for jh in range(2):
                r = WB1[ks & 1] + db*4 + jh*2
                it.append(LG(f"ds_read_b64_tr_b16 v[{r}:{r+1}], v{TA+db} offset:{(st & 3)*16384 + u*8192 + jh*1024}"))
        return it
    def creads(ks):
        cc, u = ks // 2, ks & 1
        return [LG(f"ds_read_b128 {ckv(kb, ks)}, v{CR+u} offset:{(cc % 3)*8192 + kb*2048}") for kb in range(4)]
    def treads2(g):
        st = 8 + g // 4; u = g & 3
        it = []
        for db in range(4):
            for jh in range(2):
                r = WB2[g & 1] + db*4 + jh*2
                it.append(LG(f"ds_read_b64_tr_b16 v[{r}:{r+1}], v{TB+db} offset:{(st & 3)*16384 + u*4096 + jh*512}"))
        return it

    prof_stamp(a, 1)
    a.wait_vm(("w", 0))
    a("s_barrier")
    run(treads1(0)); run(creads(0))
    a.wait_lg0()
    prof_stamp(a, 2)

    def poll_check(a_):
        a_.wait_vm("poll")
        ok = a_.newlabel("L_pok"); sp = a_.newlabel("L_psp")
        a_(f"v_readfirstlane_b32 s50, v{VPO}"); a_("s_mov_b32 s51, 0"); a_("s_nop 2")
        a_("s_cmp_ge_u32 s50, 64"); a_(f"s_cbranch_scc1 {ok}")
        a_.label(sp)
        a_(f"buffer_load_dword v{VPO}, v{VZ}, s[{SDB}:{SDB+3}], 0 offen sc1"); a_("s_waitcnt vmcnt(0)")
        a_(f"v_readfirstlane_b32 s50, v{VPO}"); a_("s_add_u32 s51, s51, 1"); a_("s_nop 2")
        a_("s_cmp_ge_u32 s50, 64"); a_(f"s_cbranch_scc1 {ok}")
        a_("s_cmp_lt_u32 s51, 0x40000"); a_(f"s_cbranch_scc1 {sp}")
        a_.label(ok)
    def hloads(a_):
        a_("s_lshl_b32 s39, s38, 10")
        a_.vmem(f"buffer_load_dwordx4 v[{XR[0]}:{XR[0]+3}], v{V16}, s[{SX}:{SX+3}], s39 offen", "hx")
        a_.vmem(f"buffer_load_dwordx4 v[{XR[1]}:{XR[1]+3}], v{V16}, s[{SX}:{SX+3}], s39 offen offset:1024", "hx")
        a_(f"s_mov_b32 s39, {WS_MODB}")
        a_.vmem(f"buffer_load_dwordx4 v[{PSA}:{PSA+3}], v{V16}, s[{SW}:{SW+3}], s39 offen sc1", "hx")
        a_.vmem(f"buffer_load_dwordx4 v[{PA1}:{PA1+3}], v{V16}, s[{SW}:{SW+3}], s39 offen offset:1024 sc1", "hx")
    def fifo_c(cc):
        pre, grps = dma_c(cc)
        r = [('S', pre)]
        for grp in grps: r += [('S', grp[0])] + [('D', x) for x in grp[1:]]
        return r
    def fifo_w(st):
        pre, grp = dma_w(st)
        return [('S', pre), ('S', grp[0])] + [('D', x) for x in grp[1:]]
    fifo = []
    for ks in range(16):
        st, u = ks // 2, ks & 1
        mf = []
        for db in range(8):
            for kb in range(4):
                d = vr(KA_(db, kb), 4)
                mf.append(mfma16(d, vr(WB1[ks & 1] + db*4, 4), ckv(kb, ks), "0" if ks == 0 else None))
        g = Sched(32)
        pre = []
        if u == 1:
            pre = [WVM(("w", st+1)), S("s_barrier")]
            if st + 3 < 8: fifo += fifo_c(st+3)
            if st + 4 < 12: fifo += fifo_w(st+4)
        if ks + 1 < 16: pre.append(WVM(("c", (ks+1)//2)))
        if ks == 2:
            pre = [mod_job] + pre
            fifo += fifo_w(3)
        if ks == 14: pre += [poll_check, hloads]
        if ks == 6:
            def signal(a_):
                l_ = a_.newlabel("L_sig")
                a_("s_cmp_lt_u32 s2, 64"); a_(f"s_cbranch_scc0 {l_}"); a_("s_cmp_eq_u32 s3, 0"); a_(f"s_cbranch_scc0 {l_}")
                a_(f"v_mov_b32 v{VPO}, 1")
                a_(f"buffer_atomic_add v{VPO}, v{VL0}, s[{SDB}:{SDB+3}], 0 offen sc1")
                a_.label(l_)
            pre.append(signal)
        if ks == 12: fifo.append(('D', VM(f"buffer_load_dword v{VPO}, v{VZ}, s[{SDB}:{SDB+3}], 0 offen sc1", "poll")))
        if ks == 15:
            for st_ in range(12, 16): fifo += fifo_w(st_)
        g.place_vmem(fifo, [3, 8, 13, 18, 23, 28] if ks < 15 else [1, 4, 7, 10, 13, 16, 19, 22, 25, 28])
        nxt = treads1(ks+1) if ks < 15 else treads2(0)
        if ks < 15: nxt = nxt[:2] + creads(ks+1) + nxt[2:]
        g.place_lds(nxt)
        g.put(31, 'W', WLG0())
        g.emit(a, mf, pre)
    prof_stamp(a, 3)
    def st_item(off, r):
        def f(a_):
            a_(f"s_add_u32 s48, s45, {off}")
            a_.vmem(f"buffer_store_dwordx4 v[{r}:{r+3}], v{V16}, s[{SW}:{SW+3}], s48 offen {STORE_KV}", "st")
        return f
    def k_epi():
        it = []
        for s_ in (3, 2, 1, 0):
            for kb in range(4):
                r = KA_(2*s_, kb)
                grp = []
                for q in range(8):
                    grp.append(('V', S(f"v_mul_f32 v{r+q}, s49, v{r+q}")))
                for q in range(4):
                    grp.append(('V', S(f"v_cvt_pk_bf16_f32 v{r+q}, v{r+2*q}, v{r+2*q+1}")))
                grp.append(('D', st_item(kb*4096 + s_*1024, r)))
                it.append(grp)
        return it
    def v_epi(half):
        it = []
        for u_ in range(2):
            for db in range(4):
                r = VA_(VB[half], 2*u_, db)
                grp = []
                for q in range(4):
                    grp.append(('V', S(f"v_cvt_pk_bf16_f32 v{r+q}, v{r+2*q}, v{r+2*q+1}")))
                grp.append(('D', st_item(16384 + u_*8192 + half*4096 + db*1024, r)))
                it.append(grp)
        return it
    epi = k_epi()
    lnq = ln_stream(XR, PSA, PA1, MSA, MCA, 216)
    stq = []; pfq = []; epiV = []
    for gk in range(32):
        half = gk // 16; ks = gk % 16; st = 8 + gk // 4; u = gk & 3
        if gk == 16: epi = epi + v_epi(0)
        mf = []
        for db in range(4):
            for kb in range(4):
                d = vr(VA_(VB[half], kb, db), 4)
                mf.append(mfma16(d, ckv(kb, ks), vr(WB2[gk & 1] + db*4, 4), "0" if ks == 0 else None))
        g = Sched(16)
        pre = []
        if u == 3 and st + 1 < 16:
            pre = [WVM(("w", st+1)), S("s_barrier")]
        g.place_vmem(fifo, [1, 4, 7, 10, 13] if fifo and gk < 3 else [4])
        if gk in (4, 6, 8, 10):
            pfq.append(('D', VM(f"buffer_load_dword v{31 if not PROFILE else 29}, v{VPF}, s[{SPF}:{SPF+3}], 0 offen offset:{((gk // 2 - 2) % 4)*1024}", "pf")))
        if gk == 15:
            for nb in range(4): pre.append(S(f"v_add_u32 v{TB+nb}, 0x10000, v{TB+nb}"))
        if gk == 4: pre.append(WVM("hx"))
        while epi and (half == 0 or ((gk & 1) == 0 and not epiV)):
            grp = epi.pop(0)
            epiV += [e for e in grp if e[0] != 'D'] + [('X', [e for e in grp if e[0] == 'D'][0][1])]
            if half == 1: break
        if gk >= 3 and stq:
            if len(stq) > 1 and len(g.g[11]) == 0: g.put(11, 'D', stq.pop(0))
            if len(g.g[14]) == 0: g.put(14, 'D', stq.pop(0))
        if pfq and len(g.g[9]) == 0: g.put(9, 'D', pfq.pop(0)[1])
        if gk < 31: g.place_lds(treads2(gk+1))
        budget = 15 if half == 0 else 99
        while epiV and budget > 0:
            if epiV[0][0] == 'X': stq.append(epiV.pop(0)[1]); continue
            k_x = next(i for i, e in enumerate(epiV) if e[0] == 'X')
            n0 = min(k_x, budget)
            part = epiV[:n0]; rest = epiV[n0:]
            g.place_valu(part, start=(2 if gk in (0, 16) else 1), end=15, per_gap=2)
            placed = n0 - len(part); budget -= placed
            epiV = part + rest
            if part: break
        if gk >= 9: g.place_valu(lnq, start=0, end=15, per_gap=2)
        g.put(15, 'W', WLG0())
        if gk == 15: assert not epi or True
        g.emit(a, mf, pre)
        if gk == 15:
            n_st = sum(1 for l in a.lines if "buffer_store_dwordx4" in l and "s48" in l)
            print("   K1: K stores issued by gk=15:", n_st, "pending:", len(stq), len(epiV))
    left = [((('st', e[1])) if e[0] == 'X' else e[1]) for e in epiV] + [('st', x) for x in stq]
    epi = [e for grp in epi for e in grp]
    epi = [('st', x) for x in stq] + [(('st', e[1]) if e[0] == 'X' else e[1]) for e in epiV] + [(("st", e[1]) if e[0] == 'D' else e[1]) for e in epi]
    code_prefetch(a, "attn_kernel", "L_attn_kernel_codeend", 84, 32, 33)
    prof_stamp(a, 4)
    a("s_nop 7")
    print("   K1: LN stream leftover at tail:", len(lnq))
    for e in lnq:
        if len(e) > 2 and e[2]: a("s_nop 1")
        e[1](a)
    a(f"v_lshrrev_b32 v{t0}, 2, v{LANE}"); a(f"v_and_b32 v{t1}, 3, v{LANE}")
    a(f"v_lshlrev_b32 v{t0}, 10, v{t0}"); a(f"v_lshl_add_u32 v{t0}, v{t1}, 8, v{t0}")
    a("s_lshr_b32 s39, s38, 4"); a("s_lshl_b32 s39, s39, 14")
    a("s_and_b32 s48, s38, 15"); a("s_lshl_b32 s48, s48, 4"); a("s_add_u32 s39, s39, s48")
    a(f"s_add_u32 s39, s39, {hex(WS_H)}")
    a.vmem(f"buffer_store_dwordx4 v[{XR[0]}:{XR[0]+3}], v{t0}, s[{SW}:{SW+3}], s39 offen", "hst")
    a.vmem(f"buffer_store_dwordx4 v[{XR[1]}:{XR[1]+3}], v{t0}, s[{SW}:{SW+3}], s39 offen offset:16", "hst")
    vl = [(('st', e[1]) if e[0] == 'D' else e[1]) for grp in v_epi(1) for e in grp]
    for e in epi + vl:
        if isinstance(e, tuple):
            a("s_nop 0"); e[1](a)
        else: e(a)
    if PROFILE:
        prof_stamp(a, 5)
        a("s_waitcnt vmcnt(0)")
        prof_stamp(a, 6); prof_flush(a, 1, SW, 10, vt=20)
    a.label(f"L_{name}_end")
    a("s_endpgm")
    a.label(f"L_{name}_codeend")
    return a.text(), descriptor(name, 512, 256), (name, 256, 256, 163840)
```

```python
from core import *

import os
MAP84 = int(os.environ.get('MAP84', '1'))
LD_C = os.environ.get('LD_C', '')
LD_W = os.environ.get('LD_W', '')
WARM = int(os.environ.get('WARM', '0'))
STORE_KV = os.environ.get("STORE_KV", "sc1")

def gen_ln_rows(a, XR, nrows, modsa, modca, tmp):
    X = tmp
    S1 = tmp + 8; T = tmp + 9; M = tmp + 10; V = tmp + 11; D = tmp + 12; U = tmp+13
    for j in range(8):
        a(f"v_add_f32 v{modca+j}, 1.0, v{modca+j}")
        round_bf16(a, modca+j, modca+j)
    for xr in XR:
        for d in range(4):
            a(f"v_lshlrev_b32 v{X+2*d}, 16, v{xr+d}")
            a(f"v_and_b32 v{X+2*d+1}, 0xffff0000, v{xr+d}")
        a(f"v_add_f32 v{S1}, v{X}, v{X+1}")
        for j in range(2, 8): a(f"v_add_f32 v{S1}, v{S1}, v{X+j}")
        wave_allreduce_add(a, S1, T)
        a(f"v_mul_f32 v{S1}, 0x3b000000, v{S1}")
        a(f"v_sub_f32 v{D}, v{X}, v{S1}")
        a(f"v_mul_f32 v{V}, v{D}, v{D}")
        for j in range(1, 8):
            a(f"v_sub_f32 v{D}, v{X+j}, v{S1}")
            a(f"v_fmac_f32 v{V}, v{D}, v{D}")
        wave_allreduce_add(a, V, T)
        a(f"v_mul_f32 v{V}, 0x3b000000, v{V}")
        round_bf16(a, V, V)
        round_bf16(a, M, S1)
        a(f"v_add_f32 v{V}, 0x3727c5ac, v{V}")
        round_bf16(a, V, V)
        a(f"v_sqrt_f32 v{V}, v{V}")
        a("s_nop 0")
        round_bf16(a, V, V)
        a(f"v_rcp_f32 v{U}, v{V}")
        a("s_nop 0")
        for j in range(8):
            a(f"v_sub_f32 v{D}, v{X+j}, v{M}")
            round_bf16(a, D, D)
            a(f"v_mul_f32 v{T}, v{D}, v{U}")
            a(f"v_fma_f32 v{S1}, -v{T}, v{V}, v{D}")
            a(f"v_fmac_f32 v{T}, v{S1}, v{U}")
            round_bf16(a, T, T)
            a(f"v_mul_f32 v{T}, v{T}, v{modca+j}")
            round_bf16(a, T, T)
            a(f"v_add_f32 v{X+j}, v{T}, v{modsa+j}")
        for d in range(4):
            a(f"v_cvt_pk_bf16_f32 v{xr+d}, v{X+2*d}, v{X+2*d+1}")

def ln_stream(XR, PSA, PA1, SA, CA, base):
    q = []
    def V(s_, m=0): q.append(('V', S(s_), m))
    def E(s_, m=0): q.append(('E', S(s_), m))
    X = [base, base + 8]; T = base + 16
    S1 = [T, T+1]; S2 = [T+2, T+3]; TT = [T+4, T+5]; M = [T+6, T+7]; R = [T+8, T+9]; P = T + 10
    def rnd8(b):
        for d in range(4): V(f"v_cvt_pk_bf16_f32 v{P+d}, v{b+2*d}, v{b+2*d+1}")
        for d in range(4):
            V(f"v_lshlrev_b32 v{b+2*d}, 16, v{P+d}"); V(f"v_and_b32 v{b+2*d+1}, 0xffff0000, v{P+d}")
    for d in range(4):
        V(f"v_lshlrev_b32 v{CA+2*d}, 16, v{PA1+d}"); V(f"v_and_b32 v{CA+2*d+1}, 0xffff0000, v{PA1+d}")
        V(f"v_lshlrev_b32 v{SA+2*d}, 16, v{PSA+d}"); V(f"v_and_b32 v{SA+2*d+1}, 0xffff0000, v{PSA+d}")
    for r in range(2):
        for d in range(4):
            V(f"v_lshlrev_b32 v{X[r]+2*d}, 16, v{XR[r]+d}"); V(f"v_and_b32 v{X[r]+2*d+1}, 0xffff0000, v{XR[r]+d}")
    for r in range(2):
        V(f"v_add_f32 v{S1[r]}, v{X[r]}, v{X[r]+1}"); V(f"v_mul_f32 v{S2[r]}, v{X[r]}, v{X[r]}"); V(f"v_fmac_f32 v{S2[r]}, v{X[r]+1}, v{X[r]+1}")
    for j in range(2, 8):
        for r in range(2):
            V(f"v_add_f32 v{S1[r]}, v{S1[r]}, v{X[r]+j}"); V(f"v_fmac_f32 v{S2[r]}, v{X[r]+j}, v{X[r]+j}")
    regs = [S1[0], S2[0], S1[1], S2[1]]
    for dpp in ("quad_perm:[1,0,3,2]", "quad_perm:[2,3,0,1]", "row_half_mirror", "row_mirror"):
        for i, v in enumerate(regs): V(f"v_add_f32_dpp v{v}, v{v}, v{v} {dpp} row_mask:0xf bank_mask:0xf", 2 if i == 0 else 0)
    tmp = [P, P+1, P+2, P+3]
    for sw in ("v_permlane16_swap_b32", "v_permlane32_swap_b32"):
        for i, v in enumerate(regs): V(f"v_mov_b32 v{tmp[i]}, v{v}", 1 if i == 0 else 0)
        for i, v in enumerate(regs): V(f"{sw} v{v}, v{tmp[i]}", 2 if i == 0 else 0)
        for i, v in enumerate(regs): V(f"v_add_f32 v{v}, v{v}, v{tmp[i]}", 2 if i == 0 else 0)
    for r in range(2):
        V(f"v_mul_f32 v{S1[r]}, 0x3b000000, v{S1[r]}"); V(f"v_mul_f32 v{S2[r]}, 0x3b000000, v{S2[r]}")
    for r in range(2): V(f"v_fma_f32 v{S2[r]}, -v{S1[r]}, v{S1[r]}, v{S2[r]}")
    for r in range(2): V(f"v_max_f32 v{S2[r]}, 0, v{S2[r]}")
    V(f"v_cvt_pk_bf16_f32 v{P}, v{S1[0]}, v{S1[1]}"); V(f"v_cvt_pk_bf16_f32 v{P+1}, v{S2[0]}, v{S2[1]}")
    V(f"v_lshlrev_b32 v{M[0]}, 16, v{P}"); V(f"v_and_b32 v{M[1]}, 0xffff0000, v{P}")
    V(f"v_lshlrev_b32 v{S2[0]}, 16, v{P+1}"); V(f"v_and_b32 v{S2[1]}, 0xffff0000, v{P+1}")
    for r in range(2): V(f"v_add_f32 v{S2[r]}, 0x3727c5ac, v{S2[r]}")
    V(f"v_cvt_pk_bf16_f32 v{P}, v{S2[0]}, v{S2[1]}")
    V(f"v_lshlrev_b32 v{S2[0]}, 16, v{P}"); V(f"v_and_b32 v{S2[1]}, 0xffff0000, v{P}")
    for r in range(2): E(f"v_sqrt_f32 v{S2[r]}, v{S2[r]}", 1)
    V(f"v_cvt_pk_bf16_f32 v{P}, v{S2[0]}, v{S2[1]}", 1)
    V(f"v_lshlrev_b32 v{S2[0]}, 16, v{P}"); V(f"v_and_b32 v{S2[1]}, 0xffff0000, v{P}")
    for r in range(2): E(f"v_rcp_f32 v{R[r]}, v{S2[r]}", 1)
    for r in range(2):
        for j in range(8): V(f"v_sub_f32 v{X[r]+j}, v{X[r]+j}, v{M[r]}", 1 if (r == 0 and j == 0) else 0)
        rnd8(X[r])
        for j in range(8): V(f"v_mul_f32 v{X[r]+j}, v{X[r]+j}, v{R[r]}")
        rnd8(X[r])
        for j in range(8): V(f"v_mul_f32 v{X[r]+j}, v{X[r]+j}, v{CA+j}")
        rnd8(X[r])
        for j in range(8): V(f"v_add_f32 v{X[r]+j}, v{X[r]+j}, v{SA+j}")
        for d in range(4): V(f"v_cvt_pk_bf16_f32 v{XR[r]+d}, v{X[r]+2*d}, v{X[r]+2*d+1}")
    return q

def gen_k1(name="kv_kernel"):
    a = Asm()
    kernel_header(a, name)
    a("s_cmp_ge_u32 s2, 256")
    a(f"s_cbranch_scc1 L_{name}_end")
    prof_init(a, 31)
    prof_stamp(a, 0)
    a(f"s_load_dwordx2 s[4:5], s[0:1], {KA['x']}")
    a(f"s_load_dwordx2 s[6:7], s[0:1], {KA['ckv']}")
    a(f"s_load_dwordx4 s[8:11], s[0:1], {KA['wuk']}")
    a(f"s_load_dwordx2 s[12:13], s[0:1], {KA['ws']}")
    a(f"s_load_dwordx4 s[52:55], s[0:1], {KA['c']}")
    a(f"s_load_dwordx2 s[56:57], s[0:1], {KA['dbg']}")
    a(f"s_load_dwordx2 s[58:59], s[0:1], {KA['wq']}")
    a("v_lshrrev_b32 v1, 6, v0")
    a("v_and_b32 v2, 63, v0")
    a("s_nop 0")
    a("v_readfirstlane_b32 s3, v1")
    a("s_waitcnt lgkmcnt(0)")
    prof_stamp(a, 7)
    code_prefetch(a, f"L_{name}_pf0", f"L_{name}_codeend", 84, 4, 29)
    a.label(f"L_{name}_pf0")
    SX, SC, SK, SV, SW = 16, 20, 24, 28, 32
    srd(a, SX, 4, SZ['x']); srd(a, SC, 6, SZ['ckv']); srd(a, SK, 8, SZ['wuk']); srd(a, SV, 10, SZ['wuv']); srd(a, SW, 12, SZ['ws'])
    if MAP84:
        a("s_and_b32 s39, s2, 7"); a("s_lshr_b32 s50, s2, 3")
        a("s_lshr_b32 s36, s39, 1"); a("s_lshl_b32 s36, s36, 3"); a("s_and_b32 s37, s50, 7"); a("s_add_u32 s36, s36, s37")
        a("s_and_b32 s37, s39, 1"); a("s_lshl_b32 s37, s37, 2"); a("s_lshr_b32 s50, s50, 3"); a("s_add_u32 s37, s37, s50")
    else:
        a("s_and_b32 s36, s2, 7"); a("s_lshl_b32 s36, s36, 2"); a("s_lshr_b32 s37, s2, 3"); a("s_and_b32 s37, s37, 3"); a("s_add_u32 s36, s36, s37")
        a("s_lshr_b32 s37, s2, 5")
    if int(os.environ.get("HX", "0")): a(f"s_xor_b32 s36, s36, {int(os.environ.get('HX', '0'))}")
    LANE = 2
    V16 = 3
    DC = 96
    DW1 = 104
    TA = 4
    CR = 116
    t0, t1, t2, t3, t4 = 12, 13, 14, 15, 16
    a(f"v_lshlrev_b32 v{V16}, 4, v{LANE}")
    SCC_, SMD, SDB, SPF = 60, 64, 68, 72
    srd(a, SCC_, 52, SZ['c']); srd(a, SMD, 54, SZ['wmod']); srd(a, SDB, 56, SZ['dbg'])
    AMW, AMC = 224, 240
    MW, MC, MA_, MT = 20, 24, 12, 26
    sCG = 76
    a("s_lshr_b32 s39, s2, 3"); a("s_and_b32 s50, s39, 3"); a("s_lshr_b32 s39, s39, 2"); a("s_mul_i32 s39, s39, 3")
    a("s_sub_u32 s51, s50, 1"); a("s_max_i32 s51, s51, 0"); a("s_add_u32 s39, s39, s51")
    a(f"s_and_b32 s{sCG}, s2, 7"); a("s_lshr_b32 s51, s39, 2"); a("s_lshl_b32 s51, s51, 3")
    a(f"s_add_u32 s{sCG}, s{sCG}, s51"); a(f"s_lshl_b32 s{sCG}, s{sCG}, 2"); a("s_and_b32 s39, s39, 3"); a(f"s_add_u32 s{sCG}, s{sCG}, s39")
    a("s_cmp_eq_u32 s50, 1"); a(f"s_cselect_b32 s{sCG}, 192, s{sCG}")
    def mod_loads(a):
        lm1 = a.newlabel("L_m1")
        a(f"s_cmp_ge_u32 s{sCG}, 192"); a(f"s_cbranch_scc1 {lm1}")
        a(f"v_lshrrev_b32 v{t0}, 1, v0")
        a(f"v_lshlrev_b32 v{t1}, 1, v{t0}")
        for i in range(4): a(f"buffer_load_ushort a{AMC+i}, v{t1}, s[{SCC_}:{SCC_+3}], 0 offen offset:{256*i}")
        a(f"v_mul_u32_u24 v{t1}, 6144, v{t0}"); a(f"v_and_b32 v{t2}, 1, v0"); a(f"v_lshl_add_u32 v{t1}, v{t2}, 4, v{t1}")
        a(f"s_lshl_b32 s39, s{sCG}, 5")
        for i in range(4):
            a(f"buffer_load_dwordx4 a[{AMW+4*i}:{AMW+4*i+3}], v{t1}, s[{SMD}:{SMD+3}], s39 offen")
            if i < 3: a(f"s_add_u32 s39, s39, {128*6144}")
        a.label(lm1)
    a("s_lshl_b32 s39, s2, 14"); a("s_lshl_b32 s50, s3, 12"); a("s_add_u32 s39, s39, s50")
    a(f"s_add_u32 s{SPF}, s58, s39"); a(f"s_addc_u32 s{SPF+1}, s59, 0"); a(f"s_and_b32 s{SPF+1}, s{SPF+1}, 0xffff")
    a(f"s_mov_b32 s{SPF+2}, 4096"); a(f"s_mov_b32 s{SPF+3}, 0x20000")
    XR = [20, 24]; PSA = 12; PA1 = 16; MSA = 192; MCA = 200
    a("s_lshl_b32 s38, s2, 3"); a("s_lshl_b32 s39, s3, 1"); a("s_add_u32 s38, s38, s39")
    a(f"v_lshrrev_b32 v{t0}, 3, v{LANE}")
    a(f"v_and_b32 v{t1}, 7, v{LANE}")
    a(f"v_lshrrev_b32 v{t2}, 1, v{t0}")
    a(f"v_xor_b32 v{t1}, v{t1}, v{t2}")
    a(f"v_lshlrev_b32 v{t1}, 4, v{t1}")
    a(f"v_lshl_add_u32 v{t1}, v{t0}, 10, v{t1}")
    a(f"v_xor_b32 v{t2}, 64, v{t1}")
    for p in range(8):
        a(f"v_add_u32 v{DC+p}, {p*8192 - (p & 3)*1024}, v{t2 if p & 1 else t1}")
    a(f"v_lshrrev_b32 v{t0}, 4, v{LANE}")
    a(f"v_and_b32 v{t1}, 15, v{LANE}")
    a(f"v_lshrrev_b32 v{t2}, 1, v{t1}")
    a(f"v_xor_b32 v{t2}, v{t2}, v{t0}")
    a(f"v_lshlrev_b32 v{t2}, 5, v{t2}")
    a(f"v_and_b32 v{t3}, 1, v{t1}")
    a(f"v_lshl_add_u32 v{t2}, v{t3}, 4, v{t2}")
    a(f"v_lshl_add_u32 v{t2}, v{t0}, 13, v{t2}")
    a(f"v_xor_b32 v{t3}, 128, v{t2}")
    for j in range(4):
        a(f"v_add_u32 v{DW1+j}, {j*4*8192 - j*1024}, v{t3 if j >= 2 else t2}")
    a("s_mul_i32 s40, s3, 24576"); a("s_add_u32 s40, s40, 65536")
    def SETUP2(a):
        a(f"v_lshrrev_b32 v{t0}, 4, v{LANE}")
        a(f"v_bfe_u32 v{t1}, v{LANE}, 2, 2")
        a(f"v_and_b32 v{t2}, 3, v{LANE}")
        a(f"v_lshl_add_u32 v{t3}, v{t0}, 3, v{t1}")
        a(f"v_and_b32 v{t4}, 1, v{t0}")
        a(f"v_lshl_add_u32 v{t4}, v{t4}, 2, v{t1}")
        a(f"v_lshlrev_b32 v{t4}, 5, v{t4}")
        a(f"v_lshlrev_b32 v17, 8, v{t3}")
        a(f"v_lshl_add_u32 v17, v{t2}, 3, v17")
        for nb in range(8):
            a(f"v_xor_b32 v18, {nb*32}, v{t4}")
            a(f"v_add_u32 v{TA+nb}, v17, v18")
        a(f"v_and_b32 v{t0}, 15, v{LANE}")
        a(f"v_lshrrev_b32 v{t1}, 4, v{LANE}")
        a(f"v_lshrrev_b32 v{t2}, 1, v{t0}")
        a(f"v_xor_b32 v{t1}, v{t1}, v{t2}")
        a(f"v_lshlrev_b32 v{t1}, 4, v{t1}")
        a(f"v_lshl_add_u32 v{t1}, v{t0}, 7, v{t1}")
        a(f"v_add_u32 v{CR}, s40, v{t1}")
        a(f"v_xor_b32 v{CR+1}, 64, v{CR}")
    a("s_lshl_b32 s41, s37, 18"); a("s_lshl_b32 s39, s3, 16"); a("s_add_u32 s41, s41, s39")
    a("s_lshl_b32 s42, s3, 17"); a("s_lshl_b32 s39, s36, 8")
    if int(os.environ.get("BASEH", "0")):
        for sr_ in (SK, SV):
            a(f"s_add_u32 s{sr_}, s{sr_}, s39"); a(f"s_addc_u32 s{sr_+1}, s{sr_+1}, 0"); a(f"s_sub_u32 s{sr_+2}, s{sr_+2}, s39")
    else:
        a("s_add_u32 s42, s42, s39")
    a("s_and_b32 s77, s3, 1"); a("s_lshl_b32 s77, s77, 12")
    a("s_lshl_b32 s44, s3, 12")
    a("s_lshl_b32 s45, s36, 5")
    if int(os.environ.get("SX1", "0")): a(f"s_xor_b32 s45, s45, {32*int(os.environ.get('SX1', '0'))}")
    a("s_lshl_b32 s39, s37, 2"); a("s_add_u32 s45, s45, s39"); a("s_add_u32 s45, s45, s3")
    a("s_lshl_b32 s45, s45, 15"); a(f"s_add_u32 s45, s45, {hex(WS_KV)}")

    a(f"s_mov_b32 s49, {QK_SCALE_HEX}")
    def dma_c(cc):
        it = []
        for half in range(2):
            grp = []
            grp.append(S(f"s_add_u32 m0, s40, {(cc % 3)*8192 + half*4096}"))
            for q in range(4):
                p = half*4 + q
                grp.append(VM(f"buffer_load_dwordx4 v{DC+p}, s[{SC}:{SC+3}], s46 offen offset:{q*1024} {LD_C} lds", ("c", cc)))
            it.append(grp)
        return S(f"s_add_u32 s46, s41, {cc*128}"), it
    VLOC = {8: 81920, 9: 106496, 10: 131072, 11: 155648, 12: 139264, 13: 65536, 14: 90112, 15: 114688}
    def dma_w(st):
        srdn = SK if st < 8 else SV
        pre = S(f"s_add_u32 s47, s42, {(st & 7)*64*8192}")
        if st < 12: m0 = [S(f"s_add_u32 m0, s44, {(st & 3)*16384}")]
        else:
            k0 = 2*(st - 8)
            m0 = [S(f"s_mov_b32 s43, {VLOC[k0]}"), S("s_cmp_ge_u32 s3, 2"), S(f"s_cselect_b32 s43, {VLOC[k0+1]}, s43"), S("s_add_u32 m0, s43, s77")]
        def m0f(a_):
            for x in m0: x(a_)
        grp = [m0f]
        for j in range(4):
            grp.append(VM(f"buffer_load_dwordx4 v{DW1+j}, s[{srdn}:{srdn+3}], s47 offen offset:{j*1024} {LD_W} lds", ("w", st)))
        return pre, grp
    def run(items):
        for it in items: it(a)
    def rung(grp):
        grp[0](a); a("s_nop 0"); run(grp[1:])
    VT = 118
    a(f"v_lshlrev_b32 v{VT}, 10, v{LANE}")
    a("s_lshr_b32 s39, s2, 3"); a("s_and_b32 s39, s39, 3"); a("s_lshl_b32 s39, s39, 16")
    a("s_lshl_b32 s50, s37, 18"); a("s_add_u32 s39, s39, s50"); a("s_lshl_b32 s50, s3, 8"); a("s_add_u32 s39, s39, s50")
    pre, grps = dma_c(0); run([pre]); [rung(g) for g in grps]
    pre, grp = dma_w(0); run([pre]); rung(grp)
    if WARM:
        a(f"buffer_load_dword v{VT+1}, v{VT}, s[{SC}:{SC+3}], s39 offen")
        a(f"buffer_load_dword v{VT+1}, v{VT}, s[{SC}:{SC+3}], s39 offen offset:128")
        a(f"v_lshlrev_b32 v{VT}, 13, v{LANE}")
        a("s_lshl_b32 s39, s37, 19"); a("s_lshl_b32 s50, s36, 8"); a("s_add_u32 s39, s39, s50")
        a("s_and_b32 s50, s3, 1"); a("s_lshl_b32 s50, s50, 7"); a("s_add_u32 s39, s39, s50")
        lwv = a.newlabel("L_wv"); lwd = a.newlabel("L_wd")
        a("s_cmp_ge_u32 s3, 2"); a(f"s_cbranch_scc1 {lwv}")
        a(f"buffer_load_dword v{VT+1}, v{VT}, s[{SK}:{SK+3}], s39 offen"); a(f"s_branch {lwd}")
        a.label(lwv); a(f"buffer_load_dword v{VT+1}, v{VT}, s[{SV}:{SV+3}], s39 offen")
        a.label(lwd)
    SETUP2(a)
    prof_stamp(a, 8)
    pre, grps = dma_c(1); run([pre]); [rung(g) for g in grps]
    pre, grp = dma_w(1); run([pre]); rung(grp)
    prof_stamp(a, 9)
    pre, grps = dma_c(2); run([pre]); [rung(g) for g in grps]
    pre, grp = dma_w(2); run([pre]); rung(grp)
    mod_loads(a)
    _mark = len(a.vm_all)
    a.vm_after_mod = lambda: min(63, len(a.vm_all) - _mark)
    def mod_job(a):
        MS = 20; MX = 118; t0, t1, t2, t3 = 24, 25, 118, 119; MW = 20
        a('s_waitcnt vmcnt(%d)' % a.vm_after_mod())
        lm2 = a.newlabel("L_m2")
        a(f"s_cmp_ge_u32 s{sCG}, 192"); a(f"s_cbranch_scc1 {lm2}")
        for i in range(4):
            r = MC + 0 + (i & 1) if False else 8 + 0
            r = MS + i
            a(f"v_accvgpr_read_b32 v{r}, a{AMC+i}")
            a(f"v_lshlrev_b32 v{r}, 16, v{r}")
            a(f"v_mul_f32 v{MT}, 0xbfb8aa3b, v{r}"); a(f"v_exp_f32 v{MT}, v{MT}"); a("s_nop 0")
            a(f"v_add_f32 v{MT}, 1.0, v{MT}"); a(f"v_rcp_f32 v{MT}, v{MT}"); a("s_nop 0")
            a(f"v_mul_f32 v{r}, v{r}, v{MT}")
            round_bf16(a, r, r)
        for i in range(4):
            for d in range(4):
                a(f"v_accvgpr_read_b32 v{MT+1}, a{AMW+4*i+d}")
                a(f"v_lshlrev_b32 v{MT}, 16, v{MT+1}"); a(f"v_and_b32 v{MT+1}, 0xffff0000, v{MT+1}")
                if i == 0:
                    a(f"v_mul_f32 v{MA_+2*d}, v{MS}, v{MT}"); a(f"v_mul_f32 v{MA_+2*d+1}, v{MS}, v{MT+1}")
                else:
                    a(f"v_fmac_f32 v{MA_+2*d}, v{MS+i}, v{MT}"); a(f"v_fmac_f32 v{MA_+2*d+1}, v{MS+i}, v{MT+1}")
        for dpp in ("quad_perm:[2,3,0,1]", "row_ror:4", "row_ror:8"):
            for j in range(8): a(f"v_add_f32_dpp v{MA_+j}, v{MA_+j}, v{MA_+j} {dpp} row_mask:0xf bank_mask:0xf")
        for sw in ("v_permlane16_swap_b32", "v_permlane32_swap_b32"):
            for j in range(8): a(f"v_mov_b32 v{MX+j}, v{MA_+j}")
            a("s_nop 0")
            for j in range(8): a(f"{sw} v{MA_+j}, v{MX+j}")
            a("s_nop 0")
            for j in range(8): a(f"v_add_f32 v{MA_+j}, v{MA_+j}, v{MX+j}")
        SCR = 3*16384
        a(f"v_and_b32 v{t0}, 1, v{LANE}"); a(f"v_lshlrev_b32 v{t0}, 5, v{t0}"); a("s_lshl_b32 s39, s3, 6"); a(f"s_add_u32 s39, s39, {SCR}")
        a(f"v_add_u32 v{t0}, s39, v{t0}")
        lw = a.newlabel("L_mw")
        a(f"v_cmp_gt_u32 vcc, 2, v{LANE}"); a("s_and_saveexec_b64 s[50:51], vcc"); a(f"s_cbranch_execz {lw}")
        a(f"ds_write_b128 v{t0}, v[{MA_}:{MA_+3}]"); a(f"ds_write_b128 v{t0}, v[{MA_+4}:{MA_+7}] offset:16")
        a.label(lw); a("s_mov_b64 exec, s[50:51]")
        a("s_waitcnt lgkmcnt(0)"); a("s_barrier")
        lf = a.newlabel("L_mf")
        a("s_cmp_lg_u32 s3, 0"); a(f"s_cbranch_scc1 {lf}")
        a(f"v_lshlrev_b32 v{t0}, 2, v{LANE}"); a(f"v_add_u32 v{t1}, {SCR}, v{t0}")
        for w in range(4): a(f"ds_read_b32 v{MW+w}, v{t1} offset:{64*w}")
        a("s_waitcnt lgkmcnt(0)")
        a(f"v_add_f32 v{MW}, v{MW}, v{MW+1}"); a(f"v_add_f32 v{MW+2}, v{MW+2}, v{MW+3}"); a(f"v_add_f32 v{MW}, v{MW}, v{MW+2}")
        round_bf16(a, MW, MW)
        a(f"v_cmp_gt_u32 vcc, 16, v{LANE}"); a("s_and_saveexec_b64 s[50:51], vcc")
        lx = a.newlabel("L_mx")
        a(f"s_cbranch_execz {lx}")
        a(f"s_lshl_b32 s39, s{sCG}, 6"); a(f"s_add_u32 s39, s39, {WS_MOD}")
        a(f"buffer_store_dword v{MW}, v{t0}, s[{SW}:{SW+3}], s39 offen sc1")
        lpk = a.newlabel("L_mpk")
        a(f"s_cmp_lt_u32 s{sCG}, 64"); a(f"s_cbranch_scc0 {lpk}")
        a(f"v_add_f32 v{MW+1}, 1.0, v{MW}"); a(f"v_cvt_pk_bf16_f32 v{MW+1}, v{MW+1}, v{MW+1}")
        a(f"v_lshrrev_b32 v{MW+2}, 16, v{MW}")
        a(f"s_cmp_ge_u32 s{sCG}, 32"); a("s_cselect_b64 vcc, -1, 0")
        a(f"v_cndmask_b32 v{MW+1}, v{MW+2}, v{MW+1}, vcc")
        a(f"v_lshlrev_b32 v{t1}, 1, v{LANE}"); a(f"s_lshl_b32 s39, s{sCG}, 5"); a(f"s_add_u32 s39, s39, {WS_MODB}")
        a(f"buffer_store_short v{MW+1}, v{t1}, s[{SW}:{SW+3}], s39 offen sc1")
        a.label(lpk)
        a(f"s_sub_u32 s39, s{sCG}, 96"); a("s_cmp_lt_u32 s39, 64"); a(f"s_cbranch_scc0 {lx}")
        a("s_lshr_b32 s48, s39, 5")
        a(f"v_add_f32 v{MW+1}, 1.0, v{MW}"); a(f"v_cvt_pk_bf16_f32 v{MW+1}, v{MW+1}, v{MW+1}")
        a(f"v_lshrrev_b32 v{MW+2}, 16, v{MW}")
        a("s_cmp_eq_u32 s48, 1"); a("s_cselect_b64 s[62:63], -1, 0") if False else None
        a("s_cmp_eq_u32 s48, 1"); a("s_cselect_b64 vcc, -1, 0")
        a(f"v_cndmask_b32 v{MW+1}, v{MW+2}, v{MW+1}, vcc")
        a("s_and_b32 s39, s39, 31"); a("s_lshl_b32 s39, s39, 4"); a(f"v_add_u32 v{t1}, s39, v{LANE}")
        a(f"v_lshrrev_b32 v{t2}, 5, v{t1}"); a(f"v_lshlrev_b32 v{t2}, 10, v{t2}")
        a(f"v_bfe_u32 v{t3}, v{t1}, 3, 2"); a(f"v_lshl_add_u32 v{t2}, v{t3}, 8, v{t2}")
        a(f"v_and_b32 v{t3}, 7, v{t1}"); a(f"v_lshl_add_u32 v{t2}, v{t3}, 1, v{t2}")
        a("s_xor_b32 s48, s48, 1"); a("s_lshl_b32 s48, s48, 4"); a(f"s_add_u32 s48, s48, {WS_AUX}")
        a(f"buffer_store_short v{MW+1}, v{t2}, s[{SW}:{SW+3}], s48 offen")
        a.label(lx); a("s_mov_b64 exec, s[50:51]")
        a.label(lf)
        a.label(lm2)
    VZ, VL0, VPO, VPF = 1, 28, 29, 30
    a(f"v_mov_b32 v{VZ}, 0")
    a(f"v_cmp_eq_u32 vcc, 0, v{LANE}"); a(f"v_mov_b32 v{VL0}, 0x1000"); a("s_nop 0"); a(f"v_cndmask_b32 v{VL0}, v{VL0}, v{VZ}, vcc")
    a(f"v_and_b32 v{VPF}, 7, v{LANE}"); a(f"v_lshlrev_b32 v{VPF}, 7, v{VPF}")

    def ckv(kb, ks): return ar((ks*4 + kb)*4, 4)
    WB1 = [32, 64]
    def KA_(db, kb): return 128 + ((db >> 1)*4 + kb)*8 + (db & 1)*4
    WB2 = [32, 48]
    def VA_(base, kb, db): return base + ((kb >> 1)*4 + db)*8 + (kb & 1)*4
    VB = [64, 128]

    def treads1(ks):
        st, u = ks // 2, ks & 1
        it = []
        for db in range(8):
            for jh in range(2):
                r = WB1[ks & 1] + db*4 + jh*2
                it.append(LG(f"ds_read_b64_tr_b16 v[{r}:{r+1}], v{TA+db} offset:{(st & 3)*16384 + u*8192 + jh*1024}"))
        return it
    def creads(ks):
        cc, u = ks // 2, ks & 1
        return [LG(f"ds_read_b128 {ckv(kb, ks)}, v{CR+u} offset:{(cc % 3)*8192 + kb*2048}") for kb in range(4)]
    def vbase(ks): return 0 if ks < 8 else (VLOC[ks] // 65536)*65536
    def treads2(g):
        half, ks = g // 16, g % 16
        loc = ((ks >> 1)*16384 + (ks & 1)*8192) if ks < 8 else VLOC[ks] - vbase(ks)
        it = []
        for db in range(4):
            for jh in range(2):
                r = WB2[g & 1] + db*4 + jh*2
                it.append(LG(f"ds_read_b64_tr_b16 v[{r}:{r+1}], v{TA+4*half+db} offset:{loc + jh*1024}"))
        return it
    def vswitch(g):
        half, ks = g // 16, g % 16
        if ks == 0: return []
        d = vbase(ks) - vbase(ks - 1)
        if d == 0: return []
        op = "v_add_u32" if d > 0 else "v_subrev_u32"
        return [S(f"{op} v{TA+4*half+db}, {hex(abs(d))}, v{TA+4*half+db}") for db in range(4)]

    prof_stamp(a, 1)
    a.wait_vm(("w", 0))
    a("s_barrier")
    run(treads1(0)); run(creads(0))
    a.wait_lg0()
    prof_stamp(a, 2)

    def poll_check(a_):
        a_.wait_vm("poll")
        ok = a_.newlabel("L_pok"); sp = a_.newlabel("L_psp")
        a_(f"v_readfirstlane_b32 s50, v{VPO}"); a_("s_mov_b32 s51, 0"); a_("s_nop 2")
        a_("s_cmp_ge_u32 s50, 64"); a_(f"s_cbranch_scc1 {ok}")
        a_.label(sp)
        a_(f"buffer_load_dword v{VPO}, v{VZ}, s[{SDB}:{SDB+3}], 0 offen sc1"); a_("s_waitcnt vmcnt(0)")
        a_(f"v_readfirstlane_b32 s50, v{VPO}"); a_("s_add_u32 s51, s51, 1"); a_("s_nop 2")
        a_("s_cmp_ge_u32 s50, 64"); a_(f"s_cbranch_scc1 {ok}")
        a_("s_cmp_lt_u32 s51, 0x40000"); a_(f"s_cbranch_scc1 {sp}")
        a_.label(ok)
    def hloads(a_):
        a_("s_lshl_b32 s39, s38, 10")
        a_.vmem(f"buffer_load_dwordx4 v[{XR[0]}:{XR[0]+3}], v{V16}, s[{SX}:{SX+3}], s39 offen", "hx")
        a_.vmem(f"buffer_load_dwordx4 v[{XR[1]}:{XR[1]+3}], v{V16}, s[{SX}:{SX+3}], s39 offen offset:1024", "hx")
        a_(f"s_mov_b32 s39, {WS_MODB}")
        a_.vmem(f"buffer_load_dwordx4 v[{PSA}:{PSA+3}], v{V16}, s[{SW}:{SW+3}], s39 offen sc1", "hx")
        a_.vmem(f"buffer_load_dwordx4 v[{PA1}:{PA1+3}], v{V16}, s[{SW}:{SW+3}], s39 offen offset:1024 sc1", "hx")
    def fifo_c(cc):
        pre, grps = dma_c(cc)
        r = [('S', pre)]
        for grp in grps: r += [('S', grp[0])] + [('D', x) for x in grp[1:]]
        return r
    def fifo_w(st):
        pre, grp = dma_w(st)
        return [('S', pre), ('S', grp[0])] + [('D', x) for x in grp[1:]]
    fifo = []
    for ks in range(16):
        st, u = ks // 2, ks & 1
        mf = []
        for db in range(8):
            for kb in range(4):
                d = vr(KA_(db, kb), 4)
                mf.append(mfma16(d, vr(WB1[ks & 1] + db*4, 4), ckv(kb, ks), "0" if ks == 0 else None))
        g = Sched(32)
        pre = []
        if u == 1:
            pre = [WVM(("w", st+1)), S("s_barrier")]
            if st + 3 < 8: fifo += fifo_c(st+3)
            if st + 4 < 12: fifo += fifo_w(st+4)
            if ks == 11: fifo += fifo_w(12) + fifo_w(13)
            if ks == 13: fifo += fifo_w(14) + fifo_w(15)
        if ks + 1 < 16: pre.append(WVM(("c", (ks+1)//2)))
        if ks == 2:
            pre = [mod_job] + pre
            fifo += fifo_w(3)
        if ks == 14: pre += [poll_check, hloads]
        if ks == 6:
            def signal(a_):
                l_ = a_.newlabel("L_sig")
                a_(f"s_cmp_lt_u32 s{sCG}, 64"); a_(f"s_cbranch_scc0 {l_}"); a_("s_cmp_eq_u32 s3, 0"); a_(f"s_cbranch_scc0 {l_}")
                a_(f"v_mov_b32 v{VPO}, 1")
                a_(f"buffer_atomic_add v{VPO}, v{VL0}, s[{SDB}:{SDB+3}], 0 offen sc1")
                a_.label(l_)
            pre.append(signal)
        if ks == 12: fifo.append(('D', VM(f"buffer_load_dword v{VPO}, v{VZ}, s[{SDB}:{SDB+3}], 0 offen sc1", "poll")))
        g.place_vmem(fifo, [3, 8, 13, 18, 23, 28] if ks < 15 else [1, 4, 7, 10, 13, 16, 19, 22, 25, 28])
        nxt = treads1(ks+1) if ks < 15 else treads2(0)
        if ks < 15: nxt = nxt[:2] + creads(ks+1) + nxt[2:]
        g.place_lds(nxt)
        g.put(31, 'W', WLG0())
        g.emit(a, mf, pre)
    prof_stamp(a, 3)
    def st_item(off, r):
        def f(a_):
            a_(f"s_add_u32 s48, s45, {off}")
            a_.vmem(f"buffer_store_dwordx4 v[{r}:{r+3}], v{V16}, s[{SW}:{SW+3}], s48 offen {STORE_KV}", "st")
        return f
    def k_epi():
        it = []
        for s_ in (3, 2, 1, 0):
            for kb in range(4):
                r = KA_(2*s_, kb)
                grp = []
                for q in range(8):
                    grp.append(('V', S(f"v_mul_f32 v{r+q}, s49, v{r+q}")))
                for q in range(4):
                    grp.append(('V', S(f"v_cvt_pk_bf16_f32 v{r+q}, v{r+2*q}, v{r+2*q+1}")))
                grp.append(('D', st_item(kb*4096 + s_*1024, r)))
                it.append(grp)
        return it
    def v_epi(half):
        it = []
        for u_ in range(2):
            for db in range(4):
                r = VA_(VB[half], 2*u_, db)
                grp = []
                for q in range(4):
                    grp.append(('V', S(f"v_cvt_pk_bf16_f32 v{r+q}, v{r+2*q}, v{r+2*q+1}")))
                grp.append(('D', st_item(16384 + u_*8192 + half*4096 + db*1024, r)))
                it.append(grp)
        return it
    epi = k_epi()
    lnq = ln_stream(XR, PSA, PA1, MSA, MCA, 216)
    stq = []; pfq = []; epiV = []
    for gk in range(32):
        half = gk // 16; ks = gk % 16; st = 8 + gk // 4; u = gk & 3
        if gk == 16: epi = epi + v_epi(0)
        mf = []
        for db in range(4):
            for kb in range(4):
                d = vr(VA_(VB[half], kb, db), 4)
                mf.append(mfma16(d, ckv(kb, ks), vr(WB2[gk & 1] + db*4, 4), "0" if ks == 0 else None))
        g = Sched(16)
        pre = []
        if gk < 15 and gk % 2 == 1:
            pre = [WVM(("w", 8 + (gk + 1)//2)), S("s_barrier")]
        if gk < 31: pre += vswitch(gk + 1)
        g.place_vmem(fifo, [1, 4, 7, 10, 13] if fifo and gk < 3 else [4])
        if gk in (4, 6, 8, 10):
            pfq.append(('D', VM(f"buffer_load_dword v{31 if not PROFILE else 29}, v{VPF}, s[{SPF}:{SPF+3}], 0 offen offset:{((gk // 2 - 2) % 4)*1024}", "pf")))
        if gk == 4: pre.append(WVM("hx"))
        while epi and (half == 0 or ((gk & 1) == 0 and not epiV)):
            grp = epi.pop(0)
            epiV += [e for e in grp if e[0] != 'D'] + [('X', [e for e in grp if e[0] == 'D'][0][1])]
            if half == 1: break
        if gk >= 3 and stq:
            if len(stq) > 1 and len(g.g[11]) == 0: g.put(11, 'D', stq.pop(0))
            if len(g.g[14]) == 0: g.put(14, 'D', stq.pop(0))
        if pfq and len(g.g[9]) == 0: g.put(9, 'D', pfq.pop(0)[1])
        if gk < 31: g.place_lds(treads2(gk+1))
        budget = 15 if half == 0 else 99
        while epiV and budget > 0:
            if epiV[0][0] == 'X': stq.append(epiV.pop(0)[1]); continue
            k_x = next(i for i, e in enumerate(epiV) if e[0] == 'X')
            n0 = min(k_x, budget)
            part = epiV[:n0]; rest = epiV[n0:]
            g.place_valu(part, start=(2 if gk in (0, 16) else 1), end=15, per_gap=2)
            placed = n0 - len(part); budget -= placed
            epiV = part + rest
            if part: break
        if gk >= 9: g.place_valu(lnq, start=0, end=15, per_gap=2)
        g.put(15, 'W', WLG0())
        if gk == 15: assert not epi or True
        g.emit(a, mf, pre)
        if gk == 15:
            n_st = sum(1 for l in a.lines if "buffer_store_dwordx4" in l and "s48" in l)
            print("   K1: K stores issued by gk=15:", n_st, "pending:", len(stq), len(epiV))
    left = [((('st', e[1])) if e[0] == 'X' else e[1]) for e in epiV] + [('st', x) for x in stq]
    epi = [e for grp in epi for e in grp]
    epi = [('st', x) for x in stq] + [(('st', e[1]) if e[0] == 'X' else e[1]) for e in epiV] + [(("st", e[1]) if e[0] == 'D' else e[1]) for e in epi]
    code_prefetch(a, "attn_kernel", "L_attn_kernel_codeend", 84, 32, 33)
    prof_stamp(a, 4)
    a("s_nop 7")
    print("   K1: LN stream leftover at tail:", len(lnq))
    for e in lnq:
        if len(e) > 2 and e[2]: a("s_nop 1")
        e[1](a)
    a(f"v_lshrrev_b32 v{t0}, 2, v{LANE}"); a(f"v_and_b32 v{t1}, 3, v{LANE}")
    a(f"v_lshlrev_b32 v{t0}, 10, v{t0}"); a(f"v_lshl_add_u32 v{t0}, v{t1}, 8, v{t0}")
    a("s_lshr_b32 s39, s38, 4"); a("s_lshl_b32 s39, s39, 14")
    a("s_and_b32 s48, s38, 15"); a("s_lshl_b32 s48, s48, 4"); a("s_add_u32 s39, s39, s48")
    a(f"s_add_u32 s39, s39, {hex(WS_H)}")
    a.vmem(f"buffer_store_dwordx4 v[{XR[0]}:{XR[0]+3}], v{t0}, s[{SW}:{SW+3}], s39 offen", "hst")
    a.vmem(f"buffer_store_dwordx4 v[{XR[1]}:{XR[1]+3}], v{t0}, s[{SW}:{SW+3}], s39 offen offset:16", "hst")
    vl = [(('st', e[1]) if e[0] == 'D' else e[1]) for grp in v_epi(1) for e in grp]
    for e in epi + vl:
        if isinstance(e, tuple):
            a("s_nop 0"); e[1](a)
        else: e(a)
    if PROFILE:
        prof_stamp(a, 5)
        a("s_waitcnt vmcnt(0)")
        prof_stamp(a, 6); prof_flush(a, 1, SW, 10, vt=20)
    a.label(f"L_{name}_end")
    a("s_endpgm")
    a.label(f"L_{name}_codeend")
    return a.text(), descriptor(name, 512, 256), (name, 256, 256, 163840)
```

```python
import re

WS_MOD   = 0x0
WS_U12   = 0x4000
WS_MODB  = 0x3800
WS_AUX   = 0xC000
WS_CNT   = 0x30000
WS_STATS = 0x10000
WS_H     = 0x100000
WS_X1    = 0x2800000
WS_Y     = 0x2A00000
WS_ACT   = 0x2000000
WS_WOF   = 0x400000
WS_WDF   = 0x800000
WS_CTX   = 0x1000000
WS_KV    = 0x2000000
WS_SIZE  = 0x4000000

import struct as _st, math as _m
QK_SCALE = _m.log2(_m.e) / _m.sqrt(128.0)
QK_SCALE_HEX = hex(_st.unpack("<I", _st.pack("<f", QK_SCALE))[0])
KA = dict(x=0, ckv=8, wq=16, wuk=24, wuv=32, wo=40, bx=48, wg=56, wu=64, wd=72, c=80, wmod=88, out=96, dbg=104, ws=112)
SZ = dict(x=2048*512*2, ckv=2048*512*2, wq=512*4096*2, wuk=512*4096*2, wuv=512*4096*2, wo=4096*512*2,
          wg=512*1792*2, wu=512*1792*2, wd=1792*512*2, c=512*2, wmod=512*3072*2, out=2048*512*2, dbg=256, ws=WS_SIZE)

def vr(base, n=1, p="v"):
    return f"{p}{base}" if n == 1 else f"{p}[{base}:{base+n-1}]"
def ar(base, n=1): return vr(base, n, "a")
def sr(base, n=1): return vr(base, n, "s")

class Asm:
    def __init__(self):
        self.lines = []
        self.vm = []
        self.vm_all = []
        self.lg = []
        self.uid = 0
    def __call__(self, s):
        for l in s.split("\n"):
            l = l.strip()
            if not l: continue
            self.lines.append(l if l.endswith(":") or l.startswith(".") else "  " + l)
    def label(self, s): self.lines.append(s + ":")
    def comment(self, s): self.lines.append("  ; " + s)
    _gid = [0]
    def newlabel(self, p="L"):
        Asm._gid[0] += 1
        return f"{p}_{Asm._gid[0]}"
    def vmem(self, s, tag=None):
        self(s); self.vm.append(tag); self.vm_all.append(tag)
    def lds(self, s, tag=None):
        self(s); self.lg.append(tag)
    def vm_count_after(self, tag):
        idx = [i for i, t in enumerate(self.vm) if t == tag or (isinstance(t, (tuple, list, set)) and tag in t)]
        if not idx: return None
        return len(self.vm) - 1 - idx[-1]
    def wait_vm_str(self, tag):
        n = self.vm_count_after(tag)
        if n is None: return None
        k = min(n, 63)
        self.vm = self.vm[len(self.vm) - k:] if k else []
        return f"s_waitcnt vmcnt({k})"
    def wait_vm(self, tag):
        s = self.wait_vm_str(tag)
        if s: self(s)
    def wait_lg_str(self, tag):
        idx = [i for i, t in enumerate(self.lg) if t == tag]
        if not idx: return None
        n = len(self.lg) - 1 - idx[-1]
        k = min(n, 15)
        self.lg = self.lg[len(self.lg) - k:] if k else []
        return f"s_waitcnt lgkmcnt({k})"
    def wait_lg(self, tag):
        s = self.wait_lg_str(tag)
        if s: self(s)
    def wait_all(self):
        self("s_waitcnt vmcnt(0) lgkmcnt(0)"); self.vm = []; self.lg = []
    def wait_lg0(self):
        self("s_waitcnt lgkmcnt(0)"); self.lg = []
    def wait_vm0(self):
        self("s_waitcnt vmcnt(0)"); self.vm = []
    def text(self): return "\n".join(self.lines) + "\n"

def srd(a, s, ptr_s, size):
    a(f"s_mov_b32 s{s}, s{ptr_s}")
    a(f"s_and_b32 s{s+1}, s{ptr_s+1}, 0xffff")
    a(f"s_mov_b32 s{s+2}, {hex(size)}")
    a(f"s_mov_b32 s{s+3}, 0x20000")

def kernel_header(a, name):
    a(f".globl {name}")
    a(".p2align 8")
    a(f".type {name},@function")
    a(f"{name}:")

def descriptor(name, vgpr, accum, sgpr=96):
    return f""".p2align 6
.amdhsa_kernel {name}
  .amdhsa_next_free_vgpr {vgpr}
  .amdhsa_next_free_sgpr {sgpr}
  .amdhsa_accum_offset {accum}
  .amdhsa_group_segment_fixed_size 0
  .amdhsa_kernarg_size 120
  .amdhsa_user_sgpr_count 2
  .amdhsa_user_sgpr_kernarg_segment_ptr 1
  .amdhsa_system_sgpr_workgroup_id_x 1
.end_amdhsa_kernel
"""

def round_bf16(a, dst, src, tmp=None):
    a(f"v_cvt_pk_bf16_f32 v{dst}, v{src}, v{src}")
    a(f"v_lshlrev_b32 v{dst}, 16, v{dst}")

def wave_allreduce_add(a, v, t):
    a(f"s_nop 1")
    a(f"v_add_f32_dpp v{v}, v{v}, v{v} quad_perm:[1,0,3,2] row_mask:0xf bank_mask:0xf")
    a(f"s_nop 1")
    a(f"v_add_f32_dpp v{v}, v{v}, v{v} quad_perm:[2,3,0,1] row_mask:0xf bank_mask:0xf")
    a(f"s_nop 1")
    a(f"v_add_f32_dpp v{v}, v{v}, v{v} row_half_mirror row_mask:0xf bank_mask:0xf")
    a(f"s_nop 1")
    a(f"v_add_f32_dpp v{v}, v{v}, v{v} row_mirror row_mask:0xf bank_mask:0xf")
    a(f"v_mov_b32 v{t}, v{v}")
    a(f"s_nop 1")
    a(f"v_permlane16_swap_b32 v{v}, v{t}")
    a(f"s_nop 1")
    a(f"v_add_f32 v{v}, v{v}, v{t}")
    a(f"v_mov_b32 v{t}, v{v}")
    a(f"s_nop 1")
    a(f"v_permlane32_swap_b32 v{v}, v{t}")
    a(f"s_nop 1")
    a(f"v_add_f32 v{v}, v{v}, v{t}")

CODEPF = int(os.environ.get("CODEPF", "1")) if "os" in globals() else 1
def code_prefetch(a, start, end, s0, vtmp, vdst, who="s2", nwg=8):
    import os
    if not int(os.environ.get("CODEPF", "1")): return
    l = a.newlabel("L_cpf"); pc = a.newlabel("L_pc")
    a(f"s_cmp_ge_u32 {who}, {nwg}"); a(f"s_cbranch_scc1 {l}")
    a(f"s_getpc_b64 s[{s0}:{s0+1}]")
    a.label(pc)
    a(f"s_add_u32 s{s0}, s{s0}, {start}-{pc}")
    a(f"s_addc_u32 s{s0+1}, s{s0+1}, 0") if True else None
    a(f"s_and_b32 s{s0+1}, s{s0+1}, 0xffff")
    a(f"s_mov_b32 s{s0+2}, {end}-{start}")
    a(f"s_mov_b32 s{s0+3}, 0x20000")
    a(f"v_lshlrev_b32 v{vtmp}, 7, v0")
    a(f"buffer_load_dword v{vdst}, v{vtmp}, s[{s0}:{s0+3}], 0 offen")
    a.label(l)

def mfma16(d, a_, b, c=None):
    return f"v_mfma_f32_16x16x32_bf16 {d}, {a_}, {b}, {d if c is None else c}"

class Gaps:
    def __init__(self, n):
        self.n = n
        self.g = [[] for _ in range(n)]
    def put(self, i, item, front=False):
        if front: self.g[i].insert(0, item)
        else: self.g[i].append(item)
    def free(self, start=0, maxlen=0):
        for i in range(start, self.n):
            if len(self.g[i]) <= maxlen: return i
        return None
    def emit(self, a, mfmas, pre=()):
        assert len(mfmas) == self.n
        for p in pre: p(a)
        for m, items in zip(mfmas, self.g):
            a(m)
            for it in items: it(a)

def S(s):
    return lambda a: a(s)
def VM(s, tag=None):
    return lambda a: a.vmem(s, tag)
def LG(s, tag=None):
    return lambda a: a.lds(s, tag)
def WVM(tag):
    return lambda a: a.wait_vm(tag)
def WLG0():
    return lambda a: a.wait_lg0()

import os
PROFILE = int(os.environ.get("PROFILE", "0"))
WS_PROF = 0x80000
PROF_V = [31]
def prof_init(a, v):
    PROF_V[0] = v
    if PROFILE: a(f"v_mov_b32 v{v}, 0")
def prof_stamp(a, slot):
    if not PROFILE: return
    a("s_memrealtime s[92:93]")
    a("s_memtime s[94:95]")
    a("s_waitcnt lgkmcnt(0)")
    a(f"v_writelane_b32 v{PROF_V[0]}, s92, {slot}")
    a(f"v_writelane_b32 v{PROF_V[0]}, s94, {16+slot}")
def prof_flush(a, kidx, ws_srd, nslots, vt=250, wg="s2"):
    if not PROFILE: return
    l = a.newlabel("prof")
    a(f"v_cmp_gt_u32 vcc, 32, v0")
    a("s_and_saveexec_b64 s[92:93], vcc")
    a(f"s_cbranch_execz {l}")
    a(f"s_lshl_b32 s94, {wg}, 7")
    a(f"s_add_u32 s94, s94, {WS_PROF + kidx*65536}")
    a(f"v_lshlrev_b32 v{vt}, 2, v0")
    a(f"buffer_store_dword v{PROF_V[0]}, v{vt}, s[{ws_srd}:{ws_srd+3}], s94 offen")
    a.label(l)
    a("s_mov_b64 exec, s[92:93]")

class Sched:
    def __init__(self, n):
        self.n = n
        self.g = [[] for _ in range(n)]
    def kinds(self, i): return "".join(k for k, _ in self.g[i])
    def put(self, i, kind, item): self.g[i].append((kind, item))
    def can_v(self, i):
        k = self.kinds(i)
        if 'D' in k or 'E' in k: return False
        return len(k) < 2
    def can_l(self, i): return len(self.g[i]) == 0
    def place_vmem(self, fifo, positions):
        for p in positions:
            if not fifo: break
            pre = []
            while fifo and fifo[0][0] != 'D': pre.append(fifo.pop(0))
            if not fifo:
                for k, it in pre: self.put(p, k, it)
                break
            assert len(self.g[p]) == 0, (p, self.kinds(p))
            q = max(p - 1, 0)
            for k, it in pre:
                if p == 0: self.put(0, k, it)
                else: self.put(q, k, it)
            if p == 0 and pre: self.put(0, 'S', S("s_nop 0"))
            self.put(p, 'D', fifo.pop(0)[1])
    def place_lds(self, items, start=0, skip=()):
        i = start
        for it in items:
            while i < self.n and (not self.can_l(i) or i in skip): i += 1
            assert i < self.n, "no room for lds reads"
            self.put(i, 'L', it); i += 1
        return i
    def place_valu(self, stream, start=0, end=None, per_gap=2):
        end = self.n if end is None else end
        last = -10
        for i in range(start, end):
            cnt = 0
            while stream and cnt < per_gap:
                e = stream[0]; k = e[0]; mind = e[2] if len(e) > 2 else 0
                if i - last < mind: break
                if k in ('E', 'D'):
                    if len(self.g[i]) == 0: self.put(i, k, e[1]); stream.pop(0); last = i
                    break
                if not self.can_v(i): break
                self.put(i, k, e[1]); stream.pop(0); last = i; cnt += 1
    def emit(self, a, mfmas, pre=()):
        assert len(mfmas) == self.n
        for p in pre: p(a)
        for m, items in zip(mfmas, self.g):
            a(m)
            for k, it in items: it(a)


def prefetch_lines(a, key, srd_s, ptr_s, voff, vdst, soff_s, nwg, wg="s2", tag="pf"):
    size = SZ[key]
    share = (size // nwg + 127) // 128 * 128
    n = (share + 8191) // 8192
    srd(a, srd_s, ptr_s, size)
    a(f"s_mul_i32 s{soff_s}, {wg}, {share}")
    for i in range(n):
        a.vmem(f"buffer_load_dword v{vdst}, v{voff}, s[{srd_s}:{srd_s+3}], s{soff_s} offen", tag)
        if i + 1 < n: a(f"s_add_u32 s{soff_s}, s{soff_s}, 8192")

class EDF:
    def __init__(self): self.q = []
    def add(self, group, need, avail=-1, after=None): self.q.append(dict(g=list(group), need=need, avail=avail, started=False))
    def take(self, step, n):
        out = []; cnt = 0
        while cnt < n:
            cand = [x for x in self.q if x['avail'] <= step]
            if not cand: break
            st = [x for x in cand if x['started']]
            x = st[0] if st else min(cand, key=lambda y: y['need'])
            x['started'] = True
            while x['g'] and cnt < n:
                k, it = x['g'].pop(0); out.append((k, it))
                if k == 'D': cnt += 1
            while x['g'] and x['g'][0][0] != 'D' and not any(k == 'D' for k, _ in x['g']):
                out.append(x['g'].pop(0))
            if not x['g']: self.q.remove(x)
        return out
    def empty(self): return not self.q


def sync_consts(a, vone, vl0, vz, lane=2):
    a(f"v_mov_b32 v{vone}, 1"); a(f"v_mov_b32 v{vz}, 0"); a(f"v_mov_b32 v{vl0}, {hex(WS_SIZE)}")
    a(f"v_cmp_eq_u32 vcc, 0, v{lane}"); a("s_nop 1"); a(f"v_cndmask_b32 v{vl0}, v{vl0}, v{vz}, vcc")

def signal(a, soff, vone, vl0, SW=16):
    l = a.newlabel("L_sg")
    a("s_waitcnt vmcnt(0)"); a.vm = []
    a("s_barrier")
    a("s_cmp_lg_u32 s3, 0"); a(f"s_cbranch_scc1 {l}")
    a(f"buffer_atomic_add v{vone}, v{vl0}, s[{SW}:{SW+3}], s{soff} offen sc1")
    a.label(l)

def await_count(a, soff, target, vz, vtmp, s0, SW=16):
    l = a.newlabel("L_aw"); sp = a.newlabel("L_as"); ok = a.newlabel("L_ao")
    a("s_cmp_lg_u32 s3, 0"); a(f"s_cbranch_scc1 {l}")
    a(f"s_mov_b32 s{s0+1}, 0")
    a.label(sp)
    a(f"buffer_load_dword v{vtmp}, v{vz}, s[{SW}:{SW+3}], s{soff} offen sc1")
    a("s_waitcnt vmcnt(0)")
    a(f"v_readfirstlane_b32 s{s0}, v{vtmp}"); a(f"s_add_u32 s{s0+1}, s{s0+1}, 1"); a("s_nop 2")
    a(f"s_cmp_ge_u32 s{s0}, {target}"); a(f"s_cbranch_scc1 {ok}")
    a("s_sleep 1")
    a(f"s_cmp_lt_u32 s{s0+1}, 0x80000"); a(f"s_cbranch_scc1 {sp}")
    a.label(ok)
    a.label(l)
    a("s_barrier")
```

```python
import sys, os
sys.path.insert(0, os.path.dirname(__file__))
from core import *
import importlib

HEADER = open("adaLN_cond__compressed_kv_cla__swiglu_ffn__prompt.s.ref").read().split("; Override launch")[0]

def build(parts, path):
    launches = [p[2] for p in parts]
    out = HEADER
    for (n, g, b, l) in launches:
        out += f"; @launch kernel={n} grid=({g},1,1) block=({b},1,1) lds={l}\n"
    out += '.amdgcn_target "amdgcn-amd-amdhsa--gfx950"\n.text\n'
    seen = set()
    for p in parts:
        if p[2][0] in seen: continue
        seen.add(p[2][0]); out += p[0]
    out += '.section .rodata,"a"\n'
    seen = set()
    for p in parts:
        if p[2][0] in seen: continue
        seen.add(p[2][0]); out += p[1]
    open(path, "w").write(out)
    print("wrote", path, len(out), "bytes")

if __name__ == "__main__":
    from k0_mod import gen_k0
    from k1_kv import gen_k1
    parts = ([gen_k0()] if os.environ.get("K0", "0") == "1" else []) + [gen_k1()]
    fuse = int(os.environ.get("FUSE", "0"))
    lst = (("k2_attn", "gen_k2"), ("k3_out", "gen_k3"), ("k4_gu", "gen_k4"), ("k5_down", "gen_k5"))
    if fuse: lst = (("k2_attn", "gen_k2"), ("k345_tail", "gen_tail"))
    for modname, fn in lst:
        if os.path.exists(os.path.join(os.path.dirname(__file__), modname + ".py")):
            m = importlib.import_module(modname)
            parts.append(getattr(m, fn)())
    build(parts, sys.argv[1] if len(sys.argv) > 1 else "k.s")
```

```python
def kernel(name, body_fn, iters, vgpr=512, accum=256, prologue="", rand=True, nwaves=4):
    L = []
    a = L.append
    a(f".globl {name}")
    a(".p2align 8")
    a(f".type {name},@function")
    a(f"{name}:")
    a("  s_load_dwordx2 s[4:5], s[0:1], 0")
    a("  s_load_dwordx2 s[6:7], s[0:1], 8")
    a("  s_waitcnt lgkmcnt(0)")
    a("  s_mov_b32 s8, s4"); a("  s_mov_b32 s9, s5"); a("  s_mov_b32 s10, 0x100000"); a("  s_mov_b32 s11, 0x20000")
    a("  s_mov_b32 s12, s6"); a("  s_mov_b32 s13, s7"); a("  s_mov_b32 s14, 0x10000000"); a("  s_mov_b32 s15, 0x20000")
    a("  v_lshrrev_b32 v1, 6, v0")
    a("  s_nop 1")
    a("  v_readfirstlane_b32 s16, v1")
    a("  v_and_b32 v2, 63, v0")
    a("  v_lshlrev_b32 v3, 4, v2")
    a("  s_nop 3")
    a("  s_lshl_b32 s17, s16, 12")
    a("  v_add_u32 v4, s17, v3")
    nv = min(256, accum)
    for i in range(8, nv):
        a(f"  v_mov_b32 v{i}, 0")
    for i in range(0, vgpr - accum):
        a(f"  v_accvgpr_write_b32 a{i}, 0")
    if rand:
        na = vgpr - accum
        for i in range(0, 16):
            base = opt_ab(vgpr, accum) + 4 * i
            pre = "a" if accum < vgpr else "v"
            a(f"  buffer_load_dwordx4 {pre}[{base}:{base+3}], v3, s[12:15], 0 offen offset:{(i%4)*1024}")
        for i in range(16):
            a(f"  s_mov_b32 m0, {i*4096}")
            a(f"  s_add_u32 s28, s17, {i*4096}")
            a(f"  s_mov_b32 m0, {i*4096}")
            a(f"  s_nop 0")
            for j in range(4):
                pass
        a("  s_mov_b32 m0, s17")
        a("  s_nop 0")
        for j in range(4):
            a(f"  buffer_load_dwordx4 v3, s[12:15], s17 offen offset:{j*1024} lds")
        a("  s_waitcnt vmcnt(0)")
    a(prologue)
    a("  s_mov_b32 s18, 0")
    a("  s_mov_b32 s30, 0")
    a("  s_barrier")
    a("  s_memrealtime s[32:33]")
    a("  s_memtime s[20:21]")
    a("  s_waitcnt lgkmcnt(0)")
    a("  .p2align 6")
    a(f"L_{name}_loop:")
    body_fn(a)
    a("  s_add_u32 s18, s18, 1")
    a(f"  s_cmp_lt_u32 s18, {iters}")
    a(f"  s_cbranch_scc1 L_{name}_loop")
    a("  s_waitcnt vmcnt(0) lgkmcnt(0)")
    a("  s_memtime s[22:23]")
    a("  s_memrealtime s[34:35]")
    a("  s_waitcnt lgkmcnt(0)")
    a("  s_sub_u32 s24, s22, s20")
    a("  s_sub_u32 s36, s34, s32")
    a(f"  s_mul_i32 s25, s2, {nwaves}")
    a("  s_add_u32 s25, s25, s16")
    a("  s_lshl_b32 s25, s25, 3")
    a("  v_mov_b32 v5, s25")
    a("  v_mov_b32 v6, s24")
    a("  v_mov_b32 v7, s36")
    a("  v_cmp_eq_u32 vcc, 0, v2")
    a("  s_and_saveexec_b64 s[26:27], vcc")
    a("  s_cbranch_execz L_%s_end" % name)
    a("  buffer_store_dwordx2 v[6:7], v5, s[8:11], 0 offen")
    a(f"L_{name}_end:")
    a("  s_endpgm")
    desc = f""".amdhsa_kernel {name}
  .amdhsa_next_free_vgpr {vgpr}
  .amdhsa_next_free_sgpr 96
  .amdhsa_accum_offset {accum}
  .amdhsa_group_segment_fixed_size 0
  .amdhsa_kernarg_size 120
  .amdhsa_user_sgpr_count 2
  .amdhsa_user_sgpr_kernarg_segment_ptr 1
  .amdhsa_system_sgpr_workgroup_id_x 1
.end_amdhsa_kernel
"""
    return "\n".join(L), desc

def opt_ab(vgpr, accum):
    return 128 if accum < vgpr and vgpr - accum >= 192 else 64

def build(path, tests, grid=256, block=256, lds=160*1024):
    hdr = []
    for t in tests:
        hdr.append(f"; @launch kernel={t[0]} grid=({t[3].get('grid',grid)},1,1) block=({t[3].get('block',block)},1,1) lds={t[3].get('lds',lds)}")
    out = "\n".join(hdr) + '\n.amdgcn_target "amdgcn-amd-amdhsa--gfx950"\n.text\n'
    descs = []
    for name, fn, iters, opt in tests:
        c, d = kernel(name, fn, iters, vgpr=opt.get("vgpr", 512), accum=opt.get("accum", 256), prologue=opt.get("prologue", ""),
                      rand=opt.get("rand", True), nwaves=opt.get("block", block)//64)
        out += c + "\n"
        descs.append(d)
    out += '.section .rodata,"a"\n.p2align 6\n' + ".p2align 6\n".join(descs)
    open(path, "w").write(out)
```

```python
import re
from mbk import *
src = open("k.s").read().split("\n")
i0 = next(i for i, l in enumerate(src) if l.startswith("L_attn_kernel_fast:"))
i1 = next(i for i, l in enumerate(src) if "s_cbranch_scc1 L_attn_kernel_fast" in l)
body = [l for l in src[i0+1:i1] if not l.endswith(":") and "s_cbranch" not in l and not l.strip().startswith(".") and 's35' not in l]
def filt(drop, repl=(), keep_every=None):
    def f(a):
        n = 0
        for l in body:
            if any(re.search(d, l) for d in drop): continue
            if keep_every and re.search(keep_every[0], l):
                n += 1
                if n % keep_every[1]: continue
            for p, r in repl: l = re.sub(p, r, l)
            a(l)
    return f
pro = """  s_mov_b32 s28, 0
  s_mov_b32 s29, 0
  s_mov_b32 s30, 0
  s_mov_b32 s33, 0
  s_mov_b32 s31, 0
  s_mov_b32 s32, 7
  s_mov_b32 s77, 0x7f000000
  s_mov_b32 s80, s12
  s_mov_b32 s81, s13
  s_mov_b32 s82, 0
  s_mov_b32 s83, 0x20000
  s_mov_b32 s79, 0
  s_mov_b32 s46, 0x28000
  s_mov_b32 s47, 0
  v_mov_b32 v30, 0
  s_mov_b32 s36, 0
  s_mov_b32 s37, 0
  s_mov_b32 s51, 0
  s_lshl_b32 s28, s16, 12
  s_add_u32 s78, s28, 65536
  v_mov_b32 v124, v3
  v_add_u32 v127, 65536, v3
  v_mov_b32 v125, v127
"""
for i in range(8):
    pro += f"  buffer_load_dwordx4 v[{128+4*i}:{131+4*i}], v3, s[12:15], s28 offen offset:{(i%4)*1024}\n"
for i in range(8):
    pro += f"  s_add_u32 m0, s28, {i*16384}\n  s_add_u32 s29, s28, {i*16384}\n  s_nop 0\n"
    for j in range(4): pro += f"  buffer_load_dwordx4 v3, s[12:15], s29 offen offset:{j*1024} lds\n"
pro += "  s_waitcnt vmcnt(0)\n"
for i in range(32):
    pro += f"  v_and_b32 v{128+i}, 0xbf7fbf7f, v{128+i}\n  v_and_b32 v{128+i}, 0xbdffbdff, v{128+i}\n"
pro += "  v_mov_b32 v116, 0x3f803f80\n  v_mov_b32 v117, 0x3f803f80\n  v_mov_b32 v118, 0x3f803f80\n  v_mov_b32 v119, 0x3f803f80\n"
tests = []
fix = [(r"s\[16:19\]", "s[12:15]"), (r"s_add_u32 s36, s36, 0x8000", "s_add_u32 s36, s36, 0"), (r"32768", "0")]
def add(n, drop, repl=(), ke=None): tests.append((n + "_kernel", filt(drop, list(fix) + list(repl), ke), 150, dict(prologue=pro, rand=False)))
add("full", [])
add("nodma", ["buffer_load", "vmcnt"])
add("nosum", [r"v_mfma.*v\[116:119\]"])
add("halfds", [], ke=("ds_read", 2))
add("nods", ["ds_read", "lgkmcnt"])
add("noexp", ["v_exp"])
add("noexpcvt", ["v_exp", "v_cvt"])
add("mfma_only", ["s_barrier", "buffer_load", "vmcnt", "ds_read", "lgkmcnt", r"^\s+s_", "v_exp", "v_cvt", "v_add", "v_max", "v_cmp"])
build("mb28.s", tests)
```
